```python
import torch

def _softmax(x, axis=-1):
    return torch.softmax(x, dim=axis)

def _gelu(x):
    return torch.nn.functional.gelu(x, approximate='tanh')

def _silu(x):
    return torch.nn.functional.silu(x)

def _sigmoid(x):
    return torch.sigmoid(x)

def _layernorm(x, axis=-1, eps=1e-05):
    m = x.mean(dim=axis, keepdim=True)
    v = x.var(dim=axis, keepdim=True, unbiased=False)
    return (x - m) / torch.sqrt(v + eps)

def _scatter_add(tgt, idx, src, axis=0):
    return tgt.clone().index_add_(axis, idx, src)

def _segment_sum(src, seg, n):
    out = torch.zeros((n,) + src.shape[1:], dtype=src.dtype)
    return out.index_add_(0, seg, src)

def _pad(x, pw):
    flat = tuple((v for pair in reversed(pw) for v in pair))
    return torch.nn.functional.pad(x, flat)
kernel_name = 'standalone__dit_block__diffusion'

def setup_inputs():

    _w = lambda a: (lambda t: t.to(torch.bfloat16) if t.is_floating_point() else t)(torch.as_tensor(a))
    B, N, D = (2, 1024, 768)
    F = 4 * D
    return {'x': _w((lambda *s: torch.randn(*s, dtype=torch.bfloat16) * 0.05)(B, N, D)), 'c': _w((lambda *s: torch.randn(*s, dtype=torch.bfloat16) * 0.2)(B, D)), 'wqkv': _w((lambda *s: torch.randn(*s, dtype=torch.bfloat16) * 0.05)(D, 3 * D)), 'wo': _w((lambda *s: torch.randn(*s, dtype=torch.bfloat16) * 0.05)(D, D)), 'w_mod': _w((lambda *s: torch.randn(*s, dtype=torch.bfloat16) * 0.2)(D, 6 * D)), 'w_fc1': _w((lambda *s: torch.randn(*s, dtype=torch.bfloat16) * 0.05)(D, F)), 'w_fc2': _w((lambda *s: torch.randn(*s, dtype=torch.bfloat16) * 0.05)(F, D))}

def reference(x, c, wqkv, wo, w_mod, w_fc1, w_fc2):
    B, N, D = x.shape
    H = 2
    Dh = D // H
    mod = (_silu(c) @ w_mod).reshape(B, 6, 1, D)
    shift_a, scale_a, gate_a, shift_m, scale_m, gate_m = [mod[:, i] for i in range(6)]
    h = _layernorm(x, axis=-1) * (1 + scale_a) + shift_a
    qkv = (h @ wqkv).reshape(B, N, 3, H, Dh)
    q, k, v = (qkv[:, :, 0].clone(), qkv[:, :, 1].clone(), qkv[:, :, 2].clone())
    attn = _softmax(torch.einsum('bqhd,bkhd->bhqk', q, k) * Dh ** (-0.5), axis=-1)
    a = torch.einsum('bhqk,bkhd->bqhd', attn, v).reshape(B, N, D) @ wo
    x = x + gate_a * a
    h2 = _layernorm(x, axis=-1) * (1 + scale_m) + shift_m
    m = _gelu(h2 @ w_fc1) @ w_fc2
    return x + gate_m * m
```

```python
import math, sys

MB = 1 << 20
WS_MOD = 0
WS_H = 1 * MB
WS_QKV = 4 * MB
WS_S = 16 * MB
WS_P = 24 * MB
WS_O = 32 * MB
WS_X1 = 36 * MB
WS_H2 = 40 * MB
WS_G = 44 * MB

KA = dict(x=0, c=8, wqkv=16, wo=24, w_mod=32, w_fc1=40, w_fc2=48, out=56, dbg=64, ws=72)

OUT = []
KERNELS = []


def e(s):
    OUT.append("    " + s)


def lab(s):
    OUT.append(s + ":")


def magic(d):
    return (0x100000000 + d - 1) // d


def sdiv(dst, src, d, tmp):
    if d & (d - 1) == 0:
        e(f"s_lshr_b32 {dst}, {src}, {int(math.log2(d))}")
    else:
        e(f"s_mov_b32 {tmp}, {magic(d)}")
        e(f"s_mul_hi_u32 {dst}, {src}, {tmp}")


def vdiv(dst, src, d, stmp):
    if d & (d - 1) == 0:
        e(f"v_lshrrev_b32 {dst}, {int(math.log2(d))}, {src}")
    else:
        e(f"s_mov_b32 {stmp}, {magic(d)}")
        e(f"v_mul_hi_u32 {dst}, {stmp}, {src}")


def srd(base, ptr_lo, ptr_hi, off, nbytes):
    if off:
        e(f"s_add_u32 s{base}, {ptr_lo}, {off}")
        e(f"s_addc_u32 s{base+1}, {ptr_hi}, 0")
    else:
        e(f"s_mov_b32 s{base}, {ptr_lo}")
        e(f"s_mov_b32 s{base+1}, {ptr_hi}")
    e(f"s_mov_b32 s{base+2}, {nbytes}")
    e(f"s_mov_b32 s{base+3}, 0x00020000")


def begin(name):
    OUT.append(".text")
    OUT.append(f".globl {name}")
    OUT.append(".p2align 8")
    OUT.append(f".type {name},@function")
    lab(name)


def load_src(src, sp):
    kind, v = src
    e(f"s_load_dwordx2 s[{sp}:{sp+1}], s[0:1], {KA[v] if kind == 'arg' else KA['ws']}")
    return 0 if kind == 'arg' else v


def gemm(name, *, Z, TM, TN, BM, BN, K, WM, WN,
         xsrc, x_zoff, lda, wsrc, w_zoff, ldb, wkn,
         osrc, o_zoff, ldo, epi, BK=64, NST=3):
    NW = WM * WN
    MT, NT = BM // WM // 16, BN // WN // 16
    KS = BK // 32
    nsteps = K // BK
    xin = BM * (BK * 2) // 1024
    if wkn:
        CPR = BN // 8 + (2 if (BN // 16) % 2 == 0 else 0)
        wbytes = BK * CPR * 16
    else:
        CPR = BK // 8
        wbytes = BN * BK * 2
    win = (wbytes + 1023) // 1024
    assert xin % NW == 0
    tot = xin + win
    tot = (tot + NW - 1) // NW * NW
    per = tot // NW
    STG = tot * 1024
    XOFF, WOFF = 0, xin * 1024
    LDS = STG * NST
    ACC = 4
    nacc = MT * NT * 4
    XF = ACC + nacc
    WF = XF + 2 * MT * 4
    VA = WF + 2 * NT * 4
    VXR = VA + per
    VWR = VXR + 1
    VT = VWR + 1
    nv = VT + 28
    begin(name)
    grid = Z * TM * TN
    e(f"s_cmp_ge_u32 s2, {grid}")
    e(f"s_cbranch_scc1 {name}_end")
    xo = load_src(xsrc, 20)
    wo_ = load_src(wsrc, 22)
    oo = load_src(osrc, 24)
    e(f"s_load_dwordx2 s[26:27], s[0:1], {KA['ws']}")
    e(f"s_load_dwordx2 s[28:29], s[0:1], {KA['x']}")
    sdiv("s30", "s2", TM * TN, "s40")
    e(f"s_mul_i32 s31, s30, {TM*TN}")
    e("s_sub_u32 s31, s2, s31")
    sdiv("s32", "s31", TN, "s40")
    e(f"s_mul_i32 s33, s32, {TN}")
    e("s_sub_u32 s33, s31, s33")
    e("s_lshr_b32 s34, s30, 1")
    e("s_and_b32 s35, s30, 1")
    e("v_lshrrev_b32 v200, 6, v0" if nv <= 200 else f"v_lshrrev_b32 v{nv}, 6, v0")
    wtmp = 200 if nv <= 200 else nv
    nv = max(nv, wtmp + 1)
    e("s_nop 0")
    e(f"v_readfirstlane_b32 s36, v{wtmp}")
    e("v_and_b32 v1, 63, v0")

    def zoff(dst, cb, ch, extra_mul):
        e(f"s_mul_i32 {dst}, s34, {cb}")
        e(f"s_mul_i32 s40, s35, {ch}")
        e(f"s_add_u32 {dst}, {dst}, s40")
        for (sr, mul) in extra_mul:
            e(f"s_mul_i32 s40, {sr}, {mul}")
            e(f"s_add_u32 {dst}, {dst}, s40")
    zoff("s37", x_zoff[0], x_zoff[1], [("s32", BM * lda)])
    zoff("s38", w_zoff[0], w_zoff[1], [("s33", BN * 2 if wkn else BN * ldb)])
    zoff("s39", o_zoff[0], o_zoff[1], [("s32", BM * ldo), ("s33", BN * 2)])
    e("s_waitcnt lgkmcnt(0)")
    for (b, p, co, so) in ((8, 20, xo, "s37"), (12, 22, wo_, "s38"), (16, 24, oo, "s39")):
        e(f"s_add_u32 s{b}, s{p}, {co}")
        e(f"s_addc_u32 s{b+1}, s{p+1}, 0")
        e(f"s_add_u32 s{b}, s{b}, {so}")
        e(f"s_addc_u32 s{b+1}, s{b+1}, 0")
        e(f"s_mov_b32 s{b+3}, 0x00020000")
    e(f"s_mov_b32 s10, {(BM-1)*lda + K*2}")
    e(f"s_mov_b32 s14, {((K-1)*ldb + BN*2) if wkn else ((BN-1)*ldb + K*2)}")
    e(f"s_mov_b32 s18, {(BM-1)*ldo + BN*2}")
    for j in range(per):
        t0 = j * NW
        e(f"s_lshl_b32 s40, s36, 6")
        e(f"v_add_u32 v{VT}, s40, v1")
        if t0 < xin:
            e(f"v_add_u32 v{VT}, {t0*64}, v{VT}")
            e(f"v_lshrrev_b32 v{VT+1}, 3, v{VT}")
            e(f"v_and_b32 v{VT+2}, 7, v{VT}")
            e(f"v_and_b32 v{VT+3}, 7, v{VT+1}")
            e(f"v_xor_b32 v{VT+2}, v{VT+2}, v{VT+3}")
            e(f"s_mov_b32 s40, {lda}")
            e(f"v_mul_lo_u32 v{VT+1}, s40, v{VT+1}")
            e(f"v_lshl_add_u32 v{VA+j}, v{VT+2}, 4, v{VT+1}")
        else:
            e(f"v_add_u32 v{VT}, {(t0-xin)*64}, v{VT}")
            if wkn:
                vdiv(f"v{VT+1}", f"v{VT}", CPR, "s40")
                e(f"v_mul_u32_u24 v{VT+2}, {CPR}, v{VT+1}")
                e(f"v_sub_u32 v{VT+2}, v{VT}, v{VT+2}")
                e(f"v_cmp_gt_u32 vcc, {BN//8}, v{VT+2}")
                e("s_nop 1")
                e(f"v_cndmask_b32 v{VT+2}, 0, v{VT+2}, vcc")
                e(f"v_min_u32 v{VT+1}, {BK-1}, v{VT+1}")
                e(f"v_and_b32 v{VT+3}, 0xfffffff3, v{VT+1}")
                e(f"v_lshlrev_b32 v{VT+4}, 1, v{VT+1}")
                e(f"v_and_b32 v{VT+4}, 8, v{VT+4}")
                e(f"v_or_b32 v{VT+3}, v{VT+3}, v{VT+4}")
                e(f"v_lshrrev_b32 v{VT+4}, 1, v{VT+1}")
                e(f"v_and_b32 v{VT+4}, 4, v{VT+4}")
                e(f"v_or_b32 v{VT+3}, v{VT+3}, v{VT+4}")
                e(f"s_mov_b32 s40, {ldb}")
                e(f"v_mul_lo_u32 v{VT+3}, s40, v{VT+3}")
                e(f"v_lshl_add_u32 v{VA+j}, v{VT+2}, 4, v{VT+3}")
            else:
                e(f"v_lshrrev_b32 v{VT+1}, 3, v{VT}")
                e(f"v_min_u32 v{VT+1}, {BN-1}, v{VT+1}")
                e(f"v_and_b32 v{VT+2}, 7, v{VT}")
                e(f"v_and_b32 v{VT+3}, 7, v{VT+1}")
                e(f"v_xor_b32 v{VT+2}, v{VT+2}, v{VT+3}")
                e(f"s_mov_b32 s40, {ldb}")
                e(f"v_mul_lo_u32 v{VT+1}, s40, v{VT+1}")
                e(f"v_lshl_add_u32 v{VA+j}, v{VT+2}, 4, v{VT+1}")
    sdiv("s41", "s36", WN, "s40")
    e(f"s_mul_i32 s42, s41, {WN}")
    e("s_sub_u32 s42, s36, s42")
    e(f"v_and_b32 v{VT}, 15, v1")
    e(f"v_lshrrev_b32 v{VT+1}, 4, v1")
    e(f"s_mul_i32 s40, s41, {MT*16}")
    e(f"v_add_u32 v{VT+2}, s40, v{VT}")
    e(f"v_and_b32 v{VT+3}, 7, v{VT+2}")
    e(f"v_xor_b32 v{VT+3}, v{VT+3}, v{VT+1}")
    e(f"v_lshlrev_b32 v{VT+2}, 7, v{VT+2}")
    e(f"v_lshl_add_u32 v{VXR}, v{VT+3}, 4, v{VT+2}")
    if wkn:
        e(f"v_lshrrev_b32 v{VT+2}, 2, v1")
        e(f"v_and_b32 v{VT+2}, 3, v{VT+2}")
        e(f"v_and_b32 v{VT+3}, 1, v{VT+1}")
        e(f"v_lshl_add_u32 v{VT+2}, v{VT+3}, 2, v{VT+2}")
        e(f"v_lshrrev_b32 v{VT+3}, 1, v{VT+1}")
        e(f"v_lshl_add_u32 v{VT+2}, v{VT+3}, 4, v{VT+2}")
        e(f"v_mul_u32_u24 v{VT+2}, {CPR*16}, v{VT+2}")
        e(f"v_and_b32 v{VT+3}, 3, v1")
        e(f"v_lshl_add_u32 v{VT+2}, v{VT+3}, 3, v{VT+2}")
        e(f"s_mul_i32 s40, s42, {NT*32}")
        e(f"v_add_u32 v{VWR}, s40, v{VT+2}")
        e(f"v_add_u32 v{VWR}, {WOFF}, v{VWR}")
    else:
        e(f"s_mul_i32 s40, s42, {NT*16}")
        e(f"v_add_u32 v{VT+2}, s40, v{VT}")
        e(f"v_and_b32 v{VT+3}, 7, v{VT+2}")
        e(f"v_xor_b32 v{VT+3}, v{VT+3}, v{VT+1}")
        e(f"v_lshlrev_b32 v{VT+2}, 7, v{VT+2}")
        e(f"v_lshl_add_u32 v{VWR}, v{VT+3}, 4, v{VT+2}")
        e(f"v_add_u32 v{VWR}, {WOFF}, v{VWR}")
    e("s_lshl_b32 s43, s36, 10")
    e("s_mov_b32 s44, 0")
    e("s_mov_b32 s45, 0")

    def issue(stage):
        for j in range(per):
            e(f"s_add_u32 m0, s43, {stage*STG + j*NW*1024}")
            e("s_nop 0")
            if j * NW < xin:
                e(f"buffer_load_dwordx4 v{VA+j}, s[8:11], s44 offen lds")
            else:
                e(f"buffer_load_dwordx4 v{VA+j}, s[12:15], s45 offen lds")
        e(f"s_add_u32 s44, s44, {BK*2}")
        e(f"s_add_u32 s45, s45, {BK*ldb if wkn else BK*2}")

    def reads(stage, ks, buf):
        sb = 0
        bx0, bx1, bw0, bw1 = [VT + 12 + stage * 4 + q for q in range(4)]
        for mt in range(MT):
            r = XF + (buf * MT + mt) * 4
            if ks == 0:
                e(f"ds_read_b128 v[{r}:{r+3}], v{bx0} offset:{sb + mt*2048}")
            else:
                e(f"ds_read_b128 v[{r}:{r+3}], v{bx1} offset:{sb + mt*2048}")
        for nt in range(NT):
            r = WF + (buf * NT + nt) * 4
            if wkn:
                o = sb + ks * 32 * CPR * 16 + nt * 32
                e(f"ds_read_b64_tr_b16 v[{r}:{r+1}], v{bw0} offset:{o}")
                e(f"ds_read_b64_tr_b16 v[{r+2}:{r+3}], v{bw0} offset:{o + 8*CPR*16}")
            else:
                if ks == 0:
                    e(f"ds_read_b128 v[{r}:{r+3}], v{bw0} offset:{sb + nt*2048}")
                else:
                    e(f"ds_read_b128 v[{r}:{r+3}], v{bw1} offset:{sb + nt*2048}")
    nrd = MT + (2 * NT if wkn else NT)

    def mfmas(buf, first):
        for nt in range(NT):
            for mt in range(MT):
                a = ACC + (nt * MT + mt) * 4
                w = WF + (buf * NT + nt) * 4
                x = XF + (buf * MT + mt) * 4
                c = "0" if first else f"v[{a}:{a+3}]"
                e(f"v_mfma_f32_16x16x32_bf16 v[{a}:{a+3}], v[{w}:{w+3}], v[{x}:{x+3}], {c}")
    assert KS == 2
    e(f"v_xor_b32 v{VT+8}, 64, v{VXR}")
    e(f"v_xor_b32 v{VT+9}, 64, v{VWR}")
    for s_ in range(NST):
        for q, src in enumerate((VXR, VT + 8, VWR, VT + 9)):
            e(f"v_add_u32 v{VT+12+s_*4+q}, {s_*STG}, v{src}")
    for s in range(min(NST - 1, nsteps)):
        issue(s)
    for k in range(nsteps):
        st = k % NST
        inflight_after = min(NST - 2, nsteps - 1 - k)
        e(f"s_waitcnt vmcnt({inflight_after*per})")
        e("s_barrier")
        reads(st, 0, 0)
        if k + NST - 1 < nsteps:
            issue((k + NST - 1) % NST)
        reads(st, 1, 1)
        e(f"s_waitcnt lgkmcnt({min(nrd,15)})")
        mfmas(0, k == 0)
        e("s_waitcnt lgkmcnt(0)")
        mfmas(1, False)
    e(f"v_and_b32 v{VT}, 15, v1")
    e(f"v_lshrrev_b32 v{VT+1}, 4, v1")
    e(f"s_mul_i32 s40, s41, {MT*16}")
    e(f"v_add_u32 v{VT}, s40, v{VT}")
    e(f"s_mul_i32 s40, s42, {NT*16}")
    e(f"v_lshl_add_u32 v{VT+1}, v{VT+1}, 2, s40")
    e(f"s_mov_b32 s40, {ldo}")
    e(f"v_mul_lo_u32 v{VT+2}, s40, v{VT}")
    e(f"v_lshl_add_u32 v{VT+2}, v{VT+1}, 1, v{VT+2}")
    if epi in ("gate_a", "gate_m"):
        gbase = (2 if epi == "gate_a" else 5) * 768 * 4
        e(f"s_mul_i32 s46, s32, {BM}")
        e("s_lshr_b32 s46, s46, 10")
        e(f"s_mul_i32 s46, s46, {4608*4}")
        e(f"s_mul_i32 s40, s33, {BN*4}")
        e("s_add_u32 s46, s46, s40")
        e(f"s_add_u32 s46, s46, {gbase}")
        srd(48, "s26", "s27", WS_MOD, 4608 * 2 * 4)
        if epi == "gate_a":
            e("s_add_u32 s52, s28, s39")
            e("s_addc_u32 s53, s29, 0")
        else:
            e(f"s_add_u32 s52, s26, {WS_X1}")
            e("s_addc_u32 s53, s27, 0")
            e("s_add_u32 s52, s52, s39")
            e("s_addc_u32 s53, s53, 0")
        e(f"s_mov_b32 s54, {(BM-1)*ldo + BN*2}")
        e("s_mov_b32 s55, 0x00020000")
        e(f"v_lshlrev_b32 v{VT+3}, 2, v{VT+1}")
    e("s_nop 7")
    e("s_nop 7")
    G = XF
    for nt in range(NT):
        if epi in ("gate_a", "gate_m"):
            e(f"buffer_load_dwordx4 v[{G}:{G+3}], v{VT+3}, s[48:51], s46 offen offset:{nt*64}")
            for mt in range(MT):
                e(f"buffer_load_dwordx2 v[{G+4+2*mt}:{G+5+2*mt}], v{VT+2}, s[52:55], 0 offen offset:{mt*16*ldo + nt*32}"
                  if mt * 16 * ldo + nt * 32 < 4096 else "")
                if mt * 16 * ldo + nt * 32 >= 4096:
                    OUT.pop()
                    e(f"v_add_u32 v{VT+4}, {mt*16*ldo + nt*32}, v{VT+2}")
                    e(f"buffer_load_dwordx2 v[{G+4+2*mt}:{G+5+2*mt}], v{VT+4}, s[52:55], 0 offen")
            e("s_waitcnt vmcnt(0)")
        for mt in range(MT):
            a = ACC + (nt * MT + mt) * 4
            if epi == "scale":
                sc = 384 ** -0.5
                import struct
                scb = struct.unpack("<I", struct.pack("<f", sc))[0]
                e(f"v_cvt_pk_bf16_f32 v{a}, v{a}, v{a+1}")
                e(f"v_cvt_pk_bf16_f32 v{a+2}, v{a+2}, v{a+3}")
                e(f"v_and_b32 v{a+1}, 0xffff0000, v{a}")
                e(f"v_lshlrev_b32 v{a}, 16, v{a}")
                e(f"v_and_b32 v{a+3}, 0xffff0000, v{a+2}")
                e(f"v_lshlrev_b32 v{a+2}, 16, v{a+2}")
                for r in range(4):
                    e(f"v_mul_f32 v{a+r}, {hex(scb)}, v{a+r}")
            elif epi == "gelu":
                for r in range(4):
                    x = f"v{a+r}"
                    t = f"v{VT+10}"
                    e(f"v_mul_f32 {t}, {x}, {x}")
                    e(f"v_mov_b32 v{VT+11}, 0x3d372713")
                    e(f"v_fma_f32 {t}, {t}, v{VT+11}, 1.0")
                    e(f"v_mul_f32 {t}, {t}, {x}")
                    e(f"v_mul_f32 {t}, 0xc0135761, {t}")
                    e(f"v_exp_f32 {t}, {t}")
                    e("s_nop 0")
                    e(f"v_add_f32 {t}, 1.0, {t}")
                    e(f"v_rcp_f32 {t}, {t}")
                    e("s_nop 0")
                    e(f"v_mul_f32 {x}, {x}, {t}")
            elif epi in ("gate_a", "gate_m"):
                for r in range(4):
                    rr = G + 4 + 2 * mt + r // 2
                    t = f"v{VT+10}"
                    if r % 2 == 0:
                        e(f"v_lshlrev_b32 {t}, 16, v{rr}")
                    else:
                        e(f"v_and_b32 {t}, 0xffff0000, v{rr}")
                    e(f"v_fma_f32 v{a+r}, v{a+r}, v{G+r}, {t}")
            e(f"v_cvt_pk_bf16_f32 v{a}, v{a}, v{a+1}")
            e(f"v_cvt_pk_bf16_f32 v{a+1}, v{a+2}, v{a+3}")
            o = mt * 16 * ldo + nt * 32
            if o < 4096:
                e(f"buffer_store_dwordx2 v[{a}:{a+1}], v{VT+2}, s[16:19], 0 offen offset:{o}")
            else:
                e(f"v_add_u32 v{VT+4}, {o}, v{VT+2}")
                e(f"buffer_store_dwordx2 v[{a}:{a+1}], v{VT+4}, s[16:19], 0 offen")
    lab(f"{name}_end")
    e("s_endpgm")
    KERNELS.append((name, grid, NW * 64, LDS, nv, 64))


def mod_kernel(name):
    begin(name)
    e("s_cmp_ge_u32 s2, 72")
    e(f"s_cbranch_scc1 {name}_end")
    e(f"s_load_dwordx2 s[20:21], s[0:1], {KA['c']}")
    e(f"s_load_dwordx2 s[22:23], s[0:1], {KA['w_mod']}")
    e(f"s_load_dwordx2 s[24:25], s[0:1], {KA['ws']}")
    e("s_waitcnt lgkmcnt(0)")
    srd(8, "s20", "s21", 0, 2 * 768 * 2)
    srd(12, "s22", "s23", 0, 768 * 4608 * 2)
    srd(16, "s24", "s25", WS_MOD, 2 * 4608 * 4)
    for i in range(6):
        e(f"v_lshlrev_b32 v2, 1, v0")
        e(f"buffer_load_ushort v{4+i}, v2, s[8:11], 0 offen offset:{512*i}")
    e("s_waitcnt vmcnt(0)")
    for i in range(6):
        x = f"v{4+i}"
        e(f"v_lshlrev_b32 {x}, 16, {x}")
        e(f"v_mul_f32 v10, 0xbfb8aa3b, {x}")
        e("v_exp_f32 v10, v10")
        e("s_nop 0")
        e("v_add_f32 v10, 1.0, v10")
        e("v_rcp_f32 v10, v10")
        e("s_nop 0")
        e(f"v_mul_f32 {x}, {x}, v10")
        e(f"v_cvt_pk_bf16_f32 {x}, {x}, {x}")
        e(f"v_lshlrev_b32 {x}, 16, {x}")
        e("v_lshlrev_b32 v2, 2, v0")
        e(f"ds_write_b32 v2, {x} offset:{1024*i}")
    e("s_waitcnt lgkmcnt(0)")
    e("s_barrier")
    e("v_and_b32 v2, 7, v0")
    e("v_lshrrev_b32 v3, 3, v0")
    e("s_lshl_b32 s30, s2, 7")
    e("s_mov_b32 s31, 9216")
    e("v_mul_lo_u32 v4, s31, v3")
    e("v_lshl_add_u32 v4, v2, 4, v4")
    for i in range(24):
        e(f"v_add_u32 v5, {i*32*9216}, v4")
        e(f"buffer_load_dwordx4 v[{32+4*i}:{35+4*i}], v5, s[12:15], s30 offen")
    e("v_lshlrev_b32 v6, 2, v3")
    for j in range(16):
        e(f"v_mov_b32 v{8+j}, 0")
    for i in range(24):
        e(f"ds_read_b32 v24, v6 offset:{i*128}")
        e(f"ds_read_b32 v25, v6 offset:{3072 + i*128}")
        e(f"s_waitcnt vmcnt({23-i}) lgkmcnt(0)")
        for q in range(4):
            w = 32 + 4 * i + q
            e(f"v_lshlrev_b32 v26, 16, v{w}")
            e(f"v_and_b32 v27, 0xffff0000, v{w}")
            e(f"v_fmac_f32 v{8+2*q}, v24, v26")
            e(f"v_fmac_f32 v{9+2*q}, v24, v27")
            e(f"v_fmac_f32 v{16+2*q}, v25, v26")
            e(f"v_fmac_f32 v{17+2*q}, v25, v27")
    e("s_barrier")
    e("v_lshlrev_b32 v6, 9, v3")
    e("v_lshl_add_u32 v6, v2, 5, v6")
    e("ds_write_b128 v6, v[8:11] offset:8192")
    e("ds_write_b128 v6, v[12:15] offset:8208")
    e("ds_write_b128 v6, v[16:19] offset:8448")
    e("ds_write_b128 v6, v[20:23] offset:8464")
    e("s_waitcnt lgkmcnt(0)")
    e("s_barrier")
    e("v_cmp_gt_u32 vcc, 128, v0")
    e("s_and_saveexec_b64 s[32:33], vcc")
    e(f"s_cbranch_execz {name}_end")
    e("v_lshlrev_b32 v6, 2, v0")
    for i in range(32):
        e(f"ds_read_b32 v{32+i}, v6 offset:{8192 + i*512}")
    e("s_waitcnt lgkmcnt(0)")
    for i in range(1, 32):
        e(f"v_add_f32 v32, v32, v{32+i}")
    e("v_cvt_pk_bf16_f32 v32, v32, v32")
    e("v_lshlrev_b32 v32, 16, v32")
    e("v_lshrrev_b32 v7, 6, v0")
    e("v_mul_u32_u24 v7, 4608, v7")
    e("v_and_b32 v8, 63, v0")
    e("v_add_u32 v7, v7, v8")
    e("s_lshl_b32 s30, s2, 6")
    e("v_add_u32 v7, s30, v7")
    e("v_lshlrev_b32 v7, 2, v7")
    e("buffer_store_dword v32, v7, s[16:19], 0 offen")
    lab(f"{name}_end")
    e("s_endpgm")
    KERNELS.append((name, 72, 256, 8192 + 16384, 136, 64))


def wave_sum(v, t, sreg):
    for off in (0x041F, 0x081F, 0x101F, 0x201F, 0x401F):
        e(f"ds_swizzle_b32 {t}, {v} offset:{hex(off)}")
        e("s_waitcnt lgkmcnt(0)")
        e(f"v_add_f32 {v}, {v}, {t}")
    e("s_nop 0")
    e(f"v_readlane_b32 {sreg}, {v}, 32")
    e(f"v_readlane_b32 s59, {v}, 0")
    e("s_nop 1")
    e(f"v_mov_b32 {v}, {sreg}")
    e(f"v_add_f32 {v}, s59, {v}")


def ln_kernel(name, src, dst_off, sh_i, sc_i):
    begin(name)
    e("s_cmp_ge_u32 s2, 512")
    e(f"s_cbranch_scc1 {name}_end")
    so = load_src(src, 20)
    e(f"s_load_dwordx2 s[24:25], s[0:1], {KA['ws']}")
    e("s_waitcnt lgkmcnt(0)")
    srd(8, "s20", "s21", so, 2048 * 1536)
    srd(12, "s24", "s25", WS_MOD, 2 * 4608 * 4)
    srd(16, "s24", "s25", dst_off, 2048 * 1536)
    e("v_lshrrev_b32 v2, 6, v0")
    e("s_lshl_b32 s30, s2, 2")
    e("v_add_u32 v2, s30, v2")
    e("v_and_b32 v1, 63, v0")
    e("s_movk_i32 s31, 1536")
    e("v_mul_lo_u32 v3, s31, v2")
    e("v_lshl_add_u32 v3, v1, 3, v3")
    for j in range(3):
        e(f"buffer_load_dwordx2 v[{4+2*j}:{5+2*j}], v3, s[8:11], 0 offen offset:{512*j}")
    e("v_lshrrev_b32 v10, 10, v2")
    e("v_mul_u32_u24 v10, 18432, v10")
    e("v_lshl_add_u32 v10, v1, 4, v10")
    e(f"v_add_u32 v11, {sh_i*3072}, v10")
    for j in range(3):
        e(f"buffer_load_dwordx4 v[{40+4*j}:{43+4*j}], v11, s[12:15], 0 offen offset:{1024*j}")
    e(f"v_add_u32 v11, {sc_i*3072}, v10")
    for j in range(3):
        e(f"buffer_load_dwordx4 v[{56+4*j}:{59+4*j}], v11, s[12:15], 0 offen offset:{1024*j}")
    e("s_waitcnt vmcnt(6)")
    for j in range(6):
        e(f"v_lshlrev_b32 v{20+2*j}, 16, v{4+j}")
        e(f"v_and_b32 v{21+2*j}, 0xffff0000, v{4+j}")
    e("v_add_f32 v12, v20, v21")
    for j in range(2, 12):
        e(f"v_add_f32 v12, v12, v{20+j}")
    wave_sum("v12", "v13", "s58")
    e("v_mul_f32 v12, 0x3aaaaaab, v12")
    for j in range(12):
        e(f"v_sub_f32 v{20+j}, v{20+j}, v12")
    e("v_mul_f32 v14, v20, v20")
    for j in range(1, 12):
        e(f"v_fmac_f32 v14, v{20+j}, v{20+j}")
    wave_sum("v14", "v13", "s58")
    e("v_mov_b32 v15, 0x3727c5ac")
    e("v_fmac_f32 v15, 0x3aaaaaab, v14")
    e("v_rsq_f32 v15, v15")
    e("s_waitcnt vmcnt(0)")
    for j in range(12):
        e(f"v_mul_f32 v{20+j}, v{20+j}, v15")
        e(f"v_add_f32 v13, 1.0, v{56+j}")
        e(f"v_fma_f32 v{20+j}, v{20+j}, v13, v{40+j}")
    for j in range(6):
        e(f"v_cvt_pk_bf16_f32 v{4+j}, v{20+2*j}, v{21+2*j}")
    for j in range(3):
        e(f"buffer_store_dwordx2 v[{4+2*j}:{5+2*j}], v3, s[16:19], 0 offen offset:{512*j}")
    lab(f"{name}_end")
    e("s_endpgm")
    KERNELS.append((name, 512, 256, 0, 72, 64))


def wave_max(v, t, sreg):
    for off in (0x041F, 0x081F, 0x101F, 0x201F, 0x401F):
        e(f"ds_swizzle_b32 {t}, {v} offset:{hex(off)}")
        e("s_waitcnt lgkmcnt(0)")
        e(f"v_max_f32 {v}, {v}, {t}")
    e("s_nop 0")
    e(f"v_readlane_b32 {sreg}, {v}, 32")
    e(f"v_readlane_b32 s59, {v}, 0")
    e("s_nop 1")
    e(f"v_mov_b32 {v}, {sreg}")
    e(f"v_max_f32 {v}, s59, {v}")


def softmax_kernel(name):
    begin(name)
    e("s_cmp_ge_u32 s2, 1024")
    e(f"s_cbranch_scc1 {name}_end")
    e(f"s_load_dwordx2 s[24:25], s[0:1], {KA['ws']}")
    e("s_waitcnt lgkmcnt(0)")
    srd(8, "s24", "s25", WS_S, 8 * MB)
    srd(16, "s24", "s25", WS_P, 8 * MB)
    e("v_lshrrev_b32 v2, 6, v0")
    e("s_lshl_b32 s30, s2, 2")
    e("v_add_u32 v2, s30, v2")
    e("v_and_b32 v1, 63, v0")
    e("v_lshlrev_b32 v3, 11, v2")
    e("v_lshl_add_u32 v3, v1, 4, v3")
    e("buffer_load_dwordx4 v[4:7], v3, s[8:11], 0 offen")
    e("buffer_load_dwordx4 v[8:11], v3, s[8:11], 0 offen offset:1024")
    e("s_waitcnt vmcnt(0)")
    for j in range(8):
        e(f"v_lshlrev_b32 v{20+2*j}, 16, v{4+j}")
        e(f"v_and_b32 v{21+2*j}, 0xffff0000, v{4+j}")
    e("v_max_f32 v12, v20, v21")
    for j in range(2, 16):
        e(f"v_max_f32 v12, v12, v{20+j}")
    wave_max("v12", "v13", "s58")
    e("v_mul_f32 v12, 0x3fb8aa3b, v12")
    e("v_mov_b32 v14, 0")
    for j in range(16):
        x = f"v{20+j}"
        e(f"v_mul_f32 {x}, 0x3fb8aa3b, {x}")
        e(f"v_sub_f32 {x}, {x}, v12")
        e(f"v_exp_f32 {x}, {x}")
        e("s_nop 0")
        e(f"v_add_f32 v14, v14, {x}")
    wave_sum("v14", "v13", "s58")
    e("v_rcp_f32 v14, v14")
    e("s_nop 0")
    for j in range(16):
        e(f"v_mul_f32 v{20+j}, v{20+j}, v14")
    for j in range(8):
        e(f"v_cvt_pk_bf16_f32 v{4+j}, v{20+2*j}, v{21+2*j}")
    e("buffer_store_dwordx4 v[4:7], v3, s[16:19], 0 offen")
    e("buffer_store_dwordx4 v[8:11], v3, s[16:19], 0 offen offset:1024")
    lab(f"{name}_end")
    e("s_endpgm")
    KERNELS.append((name, 1024, 256, 0, 40, 64))


def build():
    mod_kernel("mod_kernel")
    ln_kernel("ln1_kernel", ("arg", "x"), WS_H, 0, 1)
    gemm("qkv_kernel", Z=1, TM=16, TN=16, BM=128, BN=144, K=768, WM=4, WN=1,
         xsrc=("ws", WS_H), x_zoff=(0, 0), lda=1536, wsrc=("arg", "wqkv"), w_zoff=(0, 0), ldb=4608, wkn=True,
         osrc=("ws", WS_QKV), o_zoff=(0, 0), ldo=4608, epi="none")
    gemm("s_kernel", Z=4, TM=8, TN=8, BM=128, BN=128, K=384, WM=2, WN=2,
         xsrc=("ws", WS_QKV), x_zoff=(1024 * 4608, 768), lda=4608,
         wsrc=("ws", WS_QKV + 1536), w_zoff=(1024 * 4608, 768), ldb=4608, wkn=False,
         osrc=("ws", WS_S), o_zoff=(2 * 1024 * 2048, 1024 * 2048), ldo=2048, epi="scale")
    softmax_kernel("sm_kernel")
    gemm("pv_kernel", Z=4, TM=16, TN=4, BM=64, BN=96, K=1024, WM=2, WN=2,
         xsrc=("ws", WS_P), x_zoff=(2 * 1024 * 2048, 1024 * 2048), lda=2048,
         wsrc=("ws", WS_QKV + 3072), w_zoff=(1024 * 4608, 768), ldb=4608, wkn=True,
         osrc=("ws", WS_O), o_zoff=(1024 * 1536, 768), ldo=1536, epi="none")
    gemm("wo_kernel", Z=1, TM=32, TN=8, BM=64, BN=96, K=768, WM=2, WN=2,
         xsrc=("ws", WS_O), x_zoff=(0, 0), lda=1536, wsrc=("arg", "wo"), w_zoff=(0, 0), ldb=1536, wkn=True,
         osrc=("ws", WS_X1), o_zoff=(0, 0), ldo=1536, epi="gate_a")
    ln_kernel("ln2_kernel", ("ws", WS_X1), WS_H2, 3, 4)
    gemm("fc1_kernel", Z=1, TM=16, TN=16, BM=128, BN=192, K=768, WM=2, WN=2,
         xsrc=("ws", WS_H2), x_zoff=(0, 0), lda=1536, wsrc=("arg", "w_fc1"), w_zoff=(0, 0), ldb=6144, wkn=True,
         osrc=("ws", WS_G), o_zoff=(0, 0), ldo=6144, epi="gelu")
    gemm("fc2_kernel", Z=1, TM=32, TN=8, BM=64, BN=96, K=3072, WM=2, WN=2,
         xsrc=("ws", WS_G), x_zoff=(0, 0), lda=6144, wsrc=("arg", "w_fc2"), w_zoff=(0, 0), ldb=1536, wkn=True,
         osrc=("arg", "out"), o_zoff=(0, 0), ldo=1536, epi="gate_m")
    hdr = []
    for (n, g, b, l, v, s) in KERNELS:
        hdr.append(f"; @launch kernel={n} grid=({g},1,1) block=({b},1,1) lds={l}")
    hdr.append('.amdgcn_target "amdgcn-amd-amdhsa--gfx950"')
    tail = ['.section .rodata,"a"']
    for (n, g, b, l, v, s) in KERNELS:
        va = (v + 3) // 4 * 4
        tail += [".p2align 6", f".amdhsa_kernel {n}", f"  .amdhsa_next_free_vgpr {va}",
                 f"  .amdhsa_next_free_sgpr {s}", f"  .amdhsa_accum_offset {va}",
                 "  .amdhsa_group_segment_fixed_size 0", "  .amdhsa_kernarg_size 80",
                 "  .amdhsa_user_sgpr_count 2", "  .amdhsa_user_sgpr_kernarg_segment_ptr 1",
                 "  .amdhsa_system_sgpr_workgroup_id_x 1", ".end_amdhsa_kernel"]
    return "\n".join(hdr + OUT + tail) + "\n"


if __name__ == "__main__":
    open(sys.argv[1] if len(sys.argv) > 1 else "standalone__dit_block__diffusion.s", "w").write(build())
```

```python
import math, sys

MB = 1 << 20
WS_MOD = 0
WS_H = 1 * MB
WS_QKV = 4 * MB
WS_S = 16 * MB
WS_P = 24 * MB
WS_O = 32 * MB
WS_X1 = 36 * MB
WS_H2 = 40 * MB
WS_G = 44 * MB

KA = dict(x=0, c=8, wqkv=16, wo=24, w_mod=32, w_fc1=40, w_fc2=48, out=56, dbg=64, ws=72)

OUT = []
KERNELS = []


def e(s):
    OUT.append("    " + s)


def lab(s):
    OUT.append(s + ":")


def magic(d):
    return (0x100000000 + d - 1) // d


def sdiv(dst, src, d, tmp):
    if d & (d - 1) == 0:
        e(f"s_lshr_b32 {dst}, {src}, {int(math.log2(d))}")
    else:
        e(f"s_mov_b32 {tmp}, {magic(d)}")
        e(f"s_mul_hi_u32 {dst}, {src}, {tmp}")


def vdiv(dst, src, d, stmp):
    if d & (d - 1) == 0:
        e(f"v_lshrrev_b32 {dst}, {int(math.log2(d))}, {src}")
    else:
        e(f"s_mov_b32 {stmp}, {magic(d)}")
        e(f"v_mul_hi_u32 {dst}, {stmp}, {src}")


def srd(base, ptr_lo, ptr_hi, off, nbytes):
    if off:
        e(f"s_add_u32 s{base}, {ptr_lo}, {off}")
        e(f"s_addc_u32 s{base+1}, {ptr_hi}, 0")
    else:
        e(f"s_mov_b32 s{base}, {ptr_lo}")
        e(f"s_mov_b32 s{base+1}, {ptr_hi}")
    e(f"s_mov_b32 s{base+2}, {nbytes}")
    e(f"s_mov_b32 s{base+3}, 0x00020000")


def begin(name):
    OUT.append(".text")
    OUT.append(f".globl {name}")
    OUT.append(".p2align 8")
    OUT.append(f".type {name},@function")
    lab(name)


def load_src(src, sp):
    kind, v = src
    e(f"s_load_dwordx2 s[{sp}:{sp+1}], s[0:1], {KA[v] if kind == 'arg' else KA['ws']}")
    return 0 if kind == 'arg' else v


def gemm(name, *, Z, TM, TN, BM, BN, K, WM, WN,
         xsrc, x_zoff, lda, wsrc, w_zoff, ldb, wkn,
         osrc, o_zoff, ldo, epi, BK=64, UN=1):
    NST = 3 * UN
    NW = WM * WN
    MT, NT = BM // WM // 16, BN // WN // 16
    KS = BK // 32
    nsteps = K // BK
    xin = BM * (BK * 2) // 1024
    if wkn:
        CPR = BN // 8 + (2 if (BN // 16) % 2 == 0 else 0)
        wbytes = BK * CPR * 16
    else:
        CPR = BK // 8
        wbytes = BN * BK * 2
    win = (wbytes + 1023) // 1024
    assert xin % NW == 0
    tot = xin + win
    tot = (tot + NW - 1) // NW * NW
    per = tot // NW
    STG = tot * 1024
    XOFF, WOFF = 0, xin * 1024
    LDS = STG * NST
    ACC = 4
    nacc = MT * NT * 4
    XF = ACC + nacc
    WF = XF + 2 * MT * 4
    VA = WF + 2 * NT * 4
    VXR = VA + per
    VWR = VXR + 1
    VT = VWR + 1
    nv = VT + 12 + 4 * 3 * UN + 4
    begin(name)
    grid = Z * TM * TN
    e(f"s_cmp_ge_u32 s2, {grid}")
    e(f"s_cbranch_scc1 {name}_end")
    xo = load_src(xsrc, 20)
    wo_ = load_src(wsrc, 22)
    oo = load_src(osrc, 24)
    e(f"s_load_dwordx2 s[26:27], s[0:1], {KA['ws']}")
    e(f"s_load_dwordx2 s[28:29], s[0:1], {KA['x']}")
    sdiv("s30", "s2", TM * TN, "s40")
    e(f"s_mul_i32 s31, s30, {TM*TN}")
    e("s_sub_u32 s31, s2, s31")
    sdiv("s32", "s31", TN, "s40")
    e(f"s_mul_i32 s33, s32, {TN}")
    e("s_sub_u32 s33, s31, s33")
    e("s_lshr_b32 s34, s30, 1")
    e("s_and_b32 s35, s30, 1")
    e("v_lshrrev_b32 v200, 6, v0" if nv <= 200 else f"v_lshrrev_b32 v{nv}, 6, v0")
    wtmp = 200 if nv <= 200 else nv
    nv = max(nv, wtmp + 1)
    e("s_nop 0")
    e(f"v_readfirstlane_b32 s36, v{wtmp}")
    e("v_and_b32 v1, 63, v0")

    def zoff(dst, cb, ch, extra_mul):
        e(f"s_mul_i32 {dst}, s34, {cb}")
        e(f"s_mul_i32 s40, s35, {ch}")
        e(f"s_add_u32 {dst}, {dst}, s40")
        for (sr, mul) in extra_mul:
            e(f"s_mul_i32 s40, {sr}, {mul}")
            e(f"s_add_u32 {dst}, {dst}, s40")
    zoff("s37", x_zoff[0], x_zoff[1], [("s32", BM * lda)])
    zoff("s38", w_zoff[0], w_zoff[1], [("s33", BN * 2 if wkn else BN * ldb)])
    zoff("s39", o_zoff[0], o_zoff[1], [("s32", BM * ldo), ("s33", BN * 2)])
    e("s_waitcnt lgkmcnt(0)")
    for (b, p, co, so) in ((8, 20, xo, "s37"), (12, 22, wo_, "s38"), (16, 24, oo, "s39")):
        e(f"s_add_u32 s{b}, s{p}, {co}")
        e(f"s_addc_u32 s{b+1}, s{p+1}, 0")
        e(f"s_add_u32 s{b}, s{b}, {so}")
        e(f"s_addc_u32 s{b+1}, s{b+1}, 0")
        e(f"s_mov_b32 s{b+3}, 0x00020000")
    e(f"s_mov_b32 s10, {(BM-1)*lda + K*2}")
    e(f"s_mov_b32 s14, {((K-1)*ldb + BN*2) if wkn else ((BN-1)*ldb + K*2)}")
    e(f"s_mov_b32 s18, {(BM-1)*ldo + BN*2}")
    for j in range(per):
        t0 = j * NW
        e(f"s_lshl_b32 s40, s36, 6")
        e(f"v_add_u32 v{VT}, s40, v1")
        if t0 < xin:
            e(f"v_add_u32 v{VT}, {t0*64}, v{VT}")
            e(f"v_lshrrev_b32 v{VT+1}, 3, v{VT}")
            e(f"v_and_b32 v{VT+2}, 7, v{VT}")
            e(f"v_and_b32 v{VT+3}, 7, v{VT+1}")
            e(f"v_xor_b32 v{VT+2}, v{VT+2}, v{VT+3}")
            e(f"s_mov_b32 s40, {lda}")
            e(f"v_mul_lo_u32 v{VT+1}, s40, v{VT+1}")
            e(f"v_lshl_add_u32 v{VA+j}, v{VT+2}, 4, v{VT+1}")
        else:
            e(f"v_add_u32 v{VT}, {(t0-xin)*64}, v{VT}")
            if wkn:
                vdiv(f"v{VT+1}", f"v{VT}", CPR, "s40")
                e(f"v_mul_u32_u24 v{VT+2}, {CPR}, v{VT+1}")
                e(f"v_sub_u32 v{VT+2}, v{VT}, v{VT+2}")
                e(f"v_cmp_gt_u32 vcc, {BN//8}, v{VT+2}")
                e("s_nop 1")
                e(f"v_cndmask_b32 v{VT+2}, 0, v{VT+2}, vcc")
                e(f"v_min_u32 v{VT+1}, {BK-1}, v{VT+1}")
                e(f"v_and_b32 v{VT+3}, 0xfffffff3, v{VT+1}")
                e(f"v_lshlrev_b32 v{VT+4}, 1, v{VT+1}")
                e(f"v_and_b32 v{VT+4}, 8, v{VT+4}")
                e(f"v_or_b32 v{VT+3}, v{VT+3}, v{VT+4}")
                e(f"v_lshrrev_b32 v{VT+4}, 1, v{VT+1}")
                e(f"v_and_b32 v{VT+4}, 4, v{VT+4}")
                e(f"v_or_b32 v{VT+3}, v{VT+3}, v{VT+4}")
                e(f"s_mov_b32 s40, {ldb}")
                e(f"v_mul_lo_u32 v{VT+3}, s40, v{VT+3}")
                e(f"v_lshl_add_u32 v{VA+j}, v{VT+2}, 4, v{VT+3}")
            else:
                e(f"v_lshrrev_b32 v{VT+1}, 3, v{VT}")
                e(f"v_min_u32 v{VT+1}, {BN-1}, v{VT+1}")
                e(f"v_and_b32 v{VT+2}, 7, v{VT}")
                e(f"v_and_b32 v{VT+3}, 7, v{VT+1}")
                e(f"v_xor_b32 v{VT+2}, v{VT+2}, v{VT+3}")
                e(f"s_mov_b32 s40, {ldb}")
                e(f"v_mul_lo_u32 v{VT+1}, s40, v{VT+1}")
                e(f"v_lshl_add_u32 v{VA+j}, v{VT+2}, 4, v{VT+1}")
    sdiv("s41", "s36", WN, "s40")
    e(f"s_mul_i32 s42, s41, {WN}")
    e("s_sub_u32 s42, s36, s42")
    e(f"v_and_b32 v{VT}, 15, v1")
    e(f"v_lshrrev_b32 v{VT+1}, 4, v1")
    e(f"s_mul_i32 s40, s41, {MT*16}")
    e(f"v_add_u32 v{VT+2}, s40, v{VT}")
    e(f"v_and_b32 v{VT+3}, 7, v{VT+2}")
    e(f"v_xor_b32 v{VT+3}, v{VT+3}, v{VT+1}")
    e(f"v_lshlrev_b32 v{VT+2}, 7, v{VT+2}")
    e(f"v_lshl_add_u32 v{VXR}, v{VT+3}, 4, v{VT+2}")
    if wkn:
        e(f"v_lshrrev_b32 v{VT+2}, 2, v1")
        e(f"v_and_b32 v{VT+2}, 3, v{VT+2}")
        e(f"v_and_b32 v{VT+3}, 1, v{VT+1}")
        e(f"v_lshl_add_u32 v{VT+2}, v{VT+3}, 2, v{VT+2}")
        e(f"v_lshrrev_b32 v{VT+3}, 1, v{VT+1}")
        e(f"v_lshl_add_u32 v{VT+2}, v{VT+3}, 4, v{VT+2}")
        e(f"v_mul_u32_u24 v{VT+2}, {CPR*16}, v{VT+2}")
        e(f"v_and_b32 v{VT+3}, 3, v1")
        e(f"v_lshl_add_u32 v{VT+2}, v{VT+3}, 3, v{VT+2}")
        e(f"s_mul_i32 s40, s42, {NT*32}")
        e(f"v_add_u32 v{VWR}, s40, v{VT+2}")
        e(f"v_add_u32 v{VWR}, {WOFF}, v{VWR}")
    else:
        e(f"s_mul_i32 s40, s42, {NT*16}")
        e(f"v_add_u32 v{VT+2}, s40, v{VT}")
        e(f"v_and_b32 v{VT+3}, 7, v{VT+2}")
        e(f"v_xor_b32 v{VT+3}, v{VT+3}, v{VT+1}")
        e(f"v_lshlrev_b32 v{VT+2}, 7, v{VT+2}")
        e(f"v_lshl_add_u32 v{VWR}, v{VT+3}, 4, v{VT+2}")
        e(f"v_add_u32 v{VWR}, {WOFF}, v{VWR}")
    e("s_lshl_b32 s43, s36, 10")
    e("s_mov_b32 s44, 0")
    e("s_mov_b32 s45, 0")

    def issue(stage):
        for j in range(per):
            e(f"s_add_u32 m0, s43, {stage*STG + j*NW*1024}")
            e("s_nop 0")
            if j * NW < xin:
                e(f"buffer_load_dwordx4 v{VA+j}, s[8:11], s44 offen lds")
            else:
                e(f"buffer_load_dwordx4 v{VA+j}, s[12:15], s45 offen lds")
        e(f"s_add_u32 s44, s44, {BK*2}")
        e(f"s_add_u32 s45, s45, {BK*ldb if wkn else BK*2}")

    def reads(stage, ks, buf):
        sb = 0
        bx0, bx1, bw0, bw1 = [VT + 12 + stage * 4 + q for q in range(4)]
        for mt in range(MT):
            r = XF + (buf * MT + mt) * 4
            if ks == 0:
                e(f"ds_read_b128 v[{r}:{r+3}], v{bx0} offset:{sb + mt*2048}")
            else:
                e(f"ds_read_b128 v[{r}:{r+3}], v{bx1} offset:{sb + mt*2048}")
        for nt in range(NT):
            r = WF + (buf * NT + nt) * 4
            if wkn:
                o = sb + ks * 32 * CPR * 16 + nt * 32
                e(f"ds_read_b64_tr_b16 v[{r}:{r+1}], v{bw0} offset:{o}")
                e(f"ds_read_b64_tr_b16 v[{r+2}:{r+3}], v{bw0} offset:{o + 8*CPR*16}")
            else:
                if ks == 0:
                    e(f"ds_read_b128 v[{r}:{r+3}], v{bw0} offset:{sb + nt*2048}")
                else:
                    e(f"ds_read_b128 v[{r}:{r+3}], v{bw1} offset:{sb + nt*2048}")
    nrd = MT + (2 * NT if wkn else NT)

    def mfmas(buf, first):
        for nt in range(NT):
            for mt in range(MT):
                a = ACC + (nt * MT + mt) * 4
                w = WF + (buf * NT + nt) * 4
                x = XF + (buf * MT + mt) * 4
                c = "0" if first else f"v[{a}:{a+3}]"
                e(f"v_mfma_f32_16x16x32_bf16 v[{a}:{a+3}], v[{w}:{w+3}], v[{x}:{x+3}], {c}")
    assert KS == 2
    e(f"v_xor_b32 v{VT+8}, 64, v{VXR}")
    e(f"v_xor_b32 v{VT+9}, 64, v{VWR}")
    for s_ in range(NST):
        for q, src in enumerate((VXR, VT + 8, VWR, VT + 9)):
            e(f"v_add_u32 v{VT+12+s_*4+q}, {s_*STG}, v{src}")
    ng = nsteps // UN
    assert ng * UN == nsteps
    for g_ in range(min(2, ng)):
        for u in range(UN):
            issue(g_ * UN + u)
    for g_ in range(ng):
        inflight_after = min(1, ng - 1 - g_)
        e(f"s_waitcnt vmcnt({inflight_after*per*UN})")
        e("s_barrier")
        subs = [((g_ % 3) * UN + u, ks) for u in range(UN) for ks in range(2)]
        reads(subs[0][0], subs[0][1], 0)
        if g_ + 2 < ng:
            for u in range(UN):
                issue(((g_ + 2) % 3) * UN + u)
        for j in range(len(subs)):
            if j + 1 < len(subs):
                reads(subs[j+1][0], subs[j+1][1], (j + 1) % 2)
                e(f"s_waitcnt lgkmcnt({min(nrd,15)})")
            else:
                e("s_waitcnt lgkmcnt(0)")
            mfmas(j % 2, g_ == 0 and j == 0)
    e(f"v_and_b32 v{VT}, 15, v1")
    e(f"v_lshrrev_b32 v{VT+1}, 4, v1")
    e(f"s_mul_i32 s40, s41, {MT*16}")
    e(f"v_add_u32 v{VT}, s40, v{VT}")
    e(f"s_mul_i32 s40, s42, {NT*16}")
    e(f"v_lshl_add_u32 v{VT+1}, v{VT+1}, 2, s40")
    e(f"s_mov_b32 s40, {ldo}")
    e(f"v_mul_lo_u32 v{VT+2}, s40, v{VT}")
    e(f"v_lshl_add_u32 v{VT+2}, v{VT+1}, 1, v{VT+2}")
    if epi in ("gate_a", "gate_m"):
        gbase = (2 if epi == "gate_a" else 5) * 768 * 4
        e(f"s_mul_i32 s46, s32, {BM}")
        e("s_lshr_b32 s46, s46, 10")
        e(f"s_mul_i32 s46, s46, {4608*4}")
        e(f"s_mul_i32 s40, s33, {BN*4}")
        e("s_add_u32 s46, s46, s40")
        e(f"s_add_u32 s46, s46, {gbase}")
        srd(48, "s26", "s27", WS_MOD, 4608 * 2 * 4)
        if epi == "gate_a":
            e("s_add_u32 s52, s28, s39")
            e("s_addc_u32 s53, s29, 0")
        else:
            e(f"s_add_u32 s52, s26, {WS_X1}")
            e("s_addc_u32 s53, s27, 0")
            e("s_add_u32 s52, s52, s39")
            e("s_addc_u32 s53, s53, 0")
        e(f"s_mov_b32 s54, {(BM-1)*ldo + BN*2}")
        e("s_mov_b32 s55, 0x00020000")
        e(f"v_lshlrev_b32 v{VT+3}, 2, v{VT+1}")
    e("s_nop 7")
    e("s_nop 7")
    G = XF
    for nt in range(NT):
        if epi in ("gate_a", "gate_m"):
            e(f"buffer_load_dwordx4 v[{G}:{G+3}], v{VT+3}, s[48:51], s46 offen offset:{nt*64}")
            for mt in range(MT):
                e(f"buffer_load_dwordx2 v[{G+4+2*mt}:{G+5+2*mt}], v{VT+2}, s[52:55], 0 offen offset:{mt*16*ldo + nt*32}"
                  if mt * 16 * ldo + nt * 32 < 4096 else "")
                if mt * 16 * ldo + nt * 32 >= 4096:
                    OUT.pop()
                    e(f"v_add_u32 v{VT+4}, {mt*16*ldo + nt*32}, v{VT+2}")
                    e(f"buffer_load_dwordx2 v[{G+4+2*mt}:{G+5+2*mt}], v{VT+4}, s[52:55], 0 offen")
            e("s_waitcnt vmcnt(0)")
        for mt in range(MT):
            a = ACC + (nt * MT + mt) * 4
            if epi == "scale":
                sc = 384 ** -0.5
                import struct
                scb = struct.unpack("<I", struct.pack("<f", sc))[0]
                e(f"v_cvt_pk_bf16_f32 v{a}, v{a}, v{a+1}")
                e(f"v_cvt_pk_bf16_f32 v{a+2}, v{a+2}, v{a+3}")
                e(f"v_and_b32 v{a+1}, 0xffff0000, v{a}")
                e(f"v_lshlrev_b32 v{a}, 16, v{a}")
                e(f"v_and_b32 v{a+3}, 0xffff0000, v{a+2}")
                e(f"v_lshlrev_b32 v{a+2}, 16, v{a+2}")
                for r in range(4):
                    e(f"v_mul_f32 v{a+r}, {hex(scb)}, v{a+r}")
            elif epi == "gelu":
                for r in range(4):
                    x = f"v{a+r}"
                    t = f"v{VT+10}"
                    e(f"v_mul_f32 {t}, {x}, {x}")
                    e(f"v_mov_b32 v{VT+11}, 0x3d372713")
                    e(f"v_fma_f32 {t}, {t}, v{VT+11}, 1.0")
                    e(f"v_mul_f32 {t}, {t}, {x}")
                    e(f"v_mul_f32 {t}, 0xc0135761, {t}")
                    e(f"v_exp_f32 {t}, {t}")
                    e("s_nop 0")
                    e(f"v_add_f32 {t}, 1.0, {t}")
                    e(f"v_rcp_f32 {t}, {t}")
                    e("s_nop 0")
                    e(f"v_mul_f32 {x}, {x}, {t}")
            elif epi in ("gate_a", "gate_m"):
                for r in range(4):
                    rr = G + 4 + 2 * mt + r // 2
                    t = f"v{VT+10}"
                    if r % 2 == 0:
                        e(f"v_lshlrev_b32 {t}, 16, v{rr}")
                    else:
                        e(f"v_and_b32 {t}, 0xffff0000, v{rr}")
                    e(f"v_fma_f32 v{a+r}, v{a+r}, v{G+r}, {t}")
            e(f"v_cvt_pk_bf16_f32 v{a}, v{a}, v{a+1}")
            e(f"v_cvt_pk_bf16_f32 v{a+1}, v{a+2}, v{a+3}")
            o = mt * 16 * ldo + nt * 32
            if o < 4096:
                e(f"buffer_store_dwordx2 v[{a}:{a+1}], v{VT+2}, s[16:19], 0 offen offset:{o}")
            else:
                e(f"v_add_u32 v{VT+4}, {o}, v{VT+2}")
                e(f"buffer_store_dwordx2 v[{a}:{a+1}], v{VT+4}, s[16:19], 0 offen")
    lab(f"{name}_end")
    e("s_endpgm")
    KERNELS.append((name, grid, NW * 64, LDS, nv, 64))


def mod_kernel(name):
    begin(name)
    e("s_cmp_ge_u32 s2, 72")
    e(f"s_cbranch_scc1 {name}_end")
    e(f"s_load_dwordx2 s[20:21], s[0:1], {KA['c']}")
    e(f"s_load_dwordx2 s[22:23], s[0:1], {KA['w_mod']}")
    e(f"s_load_dwordx2 s[24:25], s[0:1], {KA['ws']}")
    e("s_waitcnt lgkmcnt(0)")
    srd(8, "s20", "s21", 0, 2 * 768 * 2)
    srd(12, "s22", "s23", 0, 768 * 4608 * 2)
    srd(16, "s24", "s25", WS_MOD, 2 * 4608 * 4)
    for i in range(6):
        e(f"v_lshlrev_b32 v2, 1, v0")
        e(f"buffer_load_ushort v{4+i}, v2, s[8:11], 0 offen offset:{512*i}")
    e("s_waitcnt vmcnt(0)")
    for i in range(6):
        x = f"v{4+i}"
        e(f"v_lshlrev_b32 {x}, 16, {x}")
        e(f"v_mul_f32 v10, 0xbfb8aa3b, {x}")
        e("v_exp_f32 v10, v10")
        e("s_nop 0")
        e("v_add_f32 v10, 1.0, v10")
        e("v_rcp_f32 v10, v10")
        e("s_nop 0")
        e(f"v_mul_f32 {x}, {x}, v10")
        e(f"v_cvt_pk_bf16_f32 {x}, {x}, {x}")
        e(f"v_lshlrev_b32 {x}, 16, {x}")
        e("v_lshlrev_b32 v2, 2, v0")
        e(f"ds_write_b32 v2, {x} offset:{1024*i}")
    e("s_waitcnt lgkmcnt(0)")
    e("s_barrier")
    e("v_and_b32 v2, 7, v0")
    e("v_lshrrev_b32 v3, 3, v0")
    e("s_lshl_b32 s30, s2, 7")
    e("s_mov_b32 s31, 9216")
    e("v_mul_lo_u32 v4, s31, v3")
    e("v_lshl_add_u32 v4, v2, 4, v4")
    for i in range(24):
        e(f"v_add_u32 v5, {i*32*9216}, v4")
        e(f"buffer_load_dwordx4 v[{32+4*i}:{35+4*i}], v5, s[12:15], s30 offen")
    e("v_lshlrev_b32 v6, 2, v3")
    for j in range(16):
        e(f"v_mov_b32 v{8+j}, 0")
    for i in range(24):
        e(f"ds_read_b32 v24, v6 offset:{i*128}")
        e(f"ds_read_b32 v25, v6 offset:{3072 + i*128}")
        e(f"s_waitcnt vmcnt({23-i}) lgkmcnt(0)")
        for q in range(4):
            w = 32 + 4 * i + q
            e(f"v_lshlrev_b32 v26, 16, v{w}")
            e(f"v_and_b32 v27, 0xffff0000, v{w}")
            e(f"v_fmac_f32 v{8+2*q}, v24, v26")
            e(f"v_fmac_f32 v{9+2*q}, v24, v27")
            e(f"v_fmac_f32 v{16+2*q}, v25, v26")
            e(f"v_fmac_f32 v{17+2*q}, v25, v27")
    e("s_barrier")
    e("v_lshlrev_b32 v6, 9, v3")
    e("v_lshl_add_u32 v6, v2, 5, v6")
    e("ds_write_b128 v6, v[8:11] offset:8192")
    e("ds_write_b128 v6, v[12:15] offset:8208")
    e("ds_write_b128 v6, v[16:19] offset:8448")
    e("ds_write_b128 v6, v[20:23] offset:8464")
    e("s_waitcnt lgkmcnt(0)")
    e("s_barrier")
    e("v_cmp_gt_u32 vcc, 128, v0")
    e("s_and_saveexec_b64 s[32:33], vcc")
    e(f"s_cbranch_execz {name}_end")
    e("v_lshlrev_b32 v6, 2, v0")
    for i in range(32):
        e(f"ds_read_b32 v{32+i}, v6 offset:{8192 + i*512}")
    e("s_waitcnt lgkmcnt(0)")
    for i in range(1, 32):
        e(f"v_add_f32 v32, v32, v{32+i}")
    e("v_cvt_pk_bf16_f32 v32, v32, v32")
    e("v_lshlrev_b32 v32, 16, v32")
    e("v_lshrrev_b32 v7, 6, v0")
    e("v_mul_u32_u24 v7, 4608, v7")
    e("v_and_b32 v8, 63, v0")
    e("v_add_u32 v7, v7, v8")
    e("s_lshl_b32 s30, s2, 6")
    e("v_add_u32 v7, s30, v7")
    e("v_lshlrev_b32 v7, 2, v7")
    e("buffer_store_dword v32, v7, s[16:19], 0 offen")
    lab(f"{name}_end")
    e("s_endpgm")
    KERNELS.append((name, 72, 256, 8192 + 16384, 136, 64))


def wave_sum(v, t, sreg):
    for off in (0x041F, 0x081F, 0x101F, 0x201F, 0x401F):
        e(f"ds_swizzle_b32 {t}, {v} offset:{hex(off)}")
        e("s_waitcnt lgkmcnt(0)")
        e(f"v_add_f32 {v}, {v}, {t}")
    e("s_nop 0")
    e(f"v_readlane_b32 {sreg}, {v}, 32")
    e(f"v_readlane_b32 s59, {v}, 0")
    e("s_nop 1")
    e(f"v_mov_b32 {v}, {sreg}")
    e(f"v_add_f32 {v}, s59, {v}")


def ln_kernel(name, src, dst_off, sh_i, sc_i):
    begin(name)
    e("s_cmp_ge_u32 s2, 512")
    e(f"s_cbranch_scc1 {name}_end")
    so = load_src(src, 20)
    e(f"s_load_dwordx2 s[24:25], s[0:1], {KA['ws']}")
    e("s_waitcnt lgkmcnt(0)")
    srd(8, "s20", "s21", so, 2048 * 1536)
    srd(12, "s24", "s25", WS_MOD, 2 * 4608 * 4)
    srd(16, "s24", "s25", dst_off, 2048 * 1536)
    e("v_lshrrev_b32 v2, 6, v0")
    e("s_lshl_b32 s30, s2, 2")
    e("v_add_u32 v2, s30, v2")
    e("v_and_b32 v1, 63, v0")
    e("s_movk_i32 s31, 1536")
    e("v_mul_lo_u32 v3, s31, v2")
    e("v_lshl_add_u32 v3, v1, 3, v3")
    for j in range(3):
        e(f"buffer_load_dwordx2 v[{4+2*j}:{5+2*j}], v3, s[8:11], 0 offen offset:{512*j}")
    e("v_lshrrev_b32 v10, 10, v2")
    e("v_mul_u32_u24 v10, 18432, v10")
    e("v_lshl_add_u32 v10, v1, 4, v10")
    e(f"v_add_u32 v11, {sh_i*3072}, v10")
    for j in range(3):
        e(f"buffer_load_dwordx4 v[{40+4*j}:{43+4*j}], v11, s[12:15], 0 offen offset:{1024*j}")
    e(f"v_add_u32 v11, {sc_i*3072}, v10")
    for j in range(3):
        e(f"buffer_load_dwordx4 v[{56+4*j}:{59+4*j}], v11, s[12:15], 0 offen offset:{1024*j}")
    e("s_waitcnt vmcnt(6)")
    for j in range(6):
        e(f"v_lshlrev_b32 v{20+2*j}, 16, v{4+j}")
        e(f"v_and_b32 v{21+2*j}, 0xffff0000, v{4+j}")
    e("v_add_f32 v12, v20, v21")
    for j in range(2, 12):
        e(f"v_add_f32 v12, v12, v{20+j}")
    wave_sum("v12", "v13", "s58")
    e("v_mul_f32 v12, 0x3aaaaaab, v12")
    for j in range(12):
        e(f"v_sub_f32 v{20+j}, v{20+j}, v12")
    e("v_mul_f32 v14, v20, v20")
    for j in range(1, 12):
        e(f"v_fmac_f32 v14, v{20+j}, v{20+j}")
    wave_sum("v14", "v13", "s58")
    e("v_mov_b32 v15, 0x3727c5ac")
    e("v_fmac_f32 v15, 0x3aaaaaab, v14")
    e("v_rsq_f32 v15, v15")
    e("s_waitcnt vmcnt(0)")
    for j in range(12):
        e(f"v_mul_f32 v{20+j}, v{20+j}, v15")
        e(f"v_add_f32 v13, 1.0, v{56+j}")
        e(f"v_fma_f32 v{20+j}, v{20+j}, v13, v{40+j}")
    for j in range(6):
        e(f"v_cvt_pk_bf16_f32 v{4+j}, v{20+2*j}, v{21+2*j}")
    for j in range(3):
        e(f"buffer_store_dwordx2 v[{4+2*j}:{5+2*j}], v3, s[16:19], 0 offen offset:{512*j}")
    lab(f"{name}_end")
    e("s_endpgm")
    KERNELS.append((name, 512, 256, 0, 72, 64))


def wave_max(v, t, sreg):
    for off in (0x041F, 0x081F, 0x101F, 0x201F, 0x401F):
        e(f"ds_swizzle_b32 {t}, {v} offset:{hex(off)}")
        e("s_waitcnt lgkmcnt(0)")
        e(f"v_max_f32 {v}, {v}, {t}")
    e("s_nop 0")
    e(f"v_readlane_b32 {sreg}, {v}, 32")
    e(f"v_readlane_b32 s59, {v}, 0")
    e("s_nop 1")
    e(f"v_mov_b32 {v}, {sreg}")
    e(f"v_max_f32 {v}, s59, {v}")


def softmax_kernel(name):
    begin(name)
    e("s_cmp_ge_u32 s2, 1024")
    e(f"s_cbranch_scc1 {name}_end")
    e(f"s_load_dwordx2 s[24:25], s[0:1], {KA['ws']}")
    e("s_waitcnt lgkmcnt(0)")
    srd(8, "s24", "s25", WS_S, 8 * MB)
    srd(16, "s24", "s25", WS_P, 8 * MB)
    e("v_lshrrev_b32 v2, 6, v0")
    e("s_lshl_b32 s30, s2, 2")
    e("v_add_u32 v2, s30, v2")
    e("v_and_b32 v1, 63, v0")
    e("v_lshlrev_b32 v3, 11, v2")
    e("v_lshl_add_u32 v3, v1, 4, v3")
    e("buffer_load_dwordx4 v[4:7], v3, s[8:11], 0 offen")
    e("buffer_load_dwordx4 v[8:11], v3, s[8:11], 0 offen offset:1024")
    e("s_waitcnt vmcnt(0)")
    for j in range(8):
        e(f"v_lshlrev_b32 v{20+2*j}, 16, v{4+j}")
        e(f"v_and_b32 v{21+2*j}, 0xffff0000, v{4+j}")
    e("v_max_f32 v12, v20, v21")
    for j in range(2, 16):
        e(f"v_max_f32 v12, v12, v{20+j}")
    wave_max("v12", "v13", "s58")
    e("v_mul_f32 v12, 0x3fb8aa3b, v12")
    e("v_mov_b32 v14, 0")
    for j in range(16):
        x = f"v{20+j}"
        e(f"v_mul_f32 {x}, 0x3fb8aa3b, {x}")
        e(f"v_sub_f32 {x}, {x}, v12")
        e(f"v_exp_f32 {x}, {x}")
        e("s_nop 0")
        e(f"v_add_f32 v14, v14, {x}")
    wave_sum("v14", "v13", "s58")
    e("v_rcp_f32 v14, v14")
    e("s_nop 0")
    for j in range(16):
        e(f"v_mul_f32 v{20+j}, v{20+j}, v14")
    for j in range(8):
        e(f"v_cvt_pk_bf16_f32 v{4+j}, v{20+2*j}, v{21+2*j}")
    e("buffer_store_dwordx4 v[4:7], v3, s[16:19], 0 offen")
    e("buffer_store_dwordx4 v[8:11], v3, s[16:19], 0 offen offset:1024")
    lab(f"{name}_end")
    e("s_endpgm")
    KERNELS.append((name, 1024, 256, 0, 40, 64))


def build():
    mod_kernel("mod_kernel")
    ln_kernel("ln1_kernel", ("arg", "x"), WS_H, 0, 1)
    gemm("qkv_kernel", Z=1, TM=16, TN=16, BM=128, BN=144, K=768, WM=4, WN=1,
         xsrc=("ws", WS_H), x_zoff=(0, 0), lda=1536, wsrc=("arg", "wqkv"), w_zoff=(0, 0), ldb=4608, wkn=True,
         osrc=("ws", WS_QKV), o_zoff=(0, 0), ldo=4608, epi="none")
    gemm("s_kernel", Z=4, TM=8, TN=8, BM=128, BN=128, K=384, WM=2, WN=2,
         xsrc=("ws", WS_QKV), x_zoff=(1024 * 4608, 768), lda=4608,
         wsrc=("ws", WS_QKV + 1536), w_zoff=(1024 * 4608, 768), ldb=4608, wkn=False,
         osrc=("ws", WS_S), o_zoff=(2 * 1024 * 2048, 1024 * 2048), ldo=2048, epi="scale")
    softmax_kernel("sm_kernel")
    gemm("pv_kernel", Z=4, TM=16, TN=4, BM=64, BN=96, K=1024, WM=2, WN=2,
         xsrc=("ws", WS_P), x_zoff=(2 * 1024 * 2048, 1024 * 2048), lda=2048,
         wsrc=("ws", WS_QKV + 3072), w_zoff=(1024 * 4608, 768), ldb=4608, wkn=True,
         osrc=("ws", WS_O), o_zoff=(1024 * 1536, 768), ldo=1536, UN=2, epi="none")
    gemm("wo_kernel", Z=1, TM=32, TN=8, BM=64, BN=96, K=768, WM=2, WN=2,
         xsrc=("ws", WS_O), x_zoff=(0, 0), lda=1536, wsrc=("arg", "wo"), w_zoff=(0, 0), ldb=1536, wkn=True,
         osrc=("ws", WS_X1), o_zoff=(0, 0), ldo=1536, UN=2, epi="gate_a")
    ln_kernel("ln2_kernel", ("ws", WS_X1), WS_H2, 3, 4)
    gemm("fc1_kernel", Z=1, TM=16, TN=16, BM=128, BN=192, K=768, WM=2, WN=2,
         xsrc=("ws", WS_H2), x_zoff=(0, 0), lda=1536, wsrc=("arg", "w_fc1"), w_zoff=(0, 0), ldb=6144, wkn=True,
         osrc=("ws", WS_G), o_zoff=(0, 0), ldo=6144, epi="gelu")
    gemm("fc2_kernel", Z=1, TM=32, TN=8, BM=64, BN=96, K=3072, WM=2, WN=2,
         xsrc=("ws", WS_G), x_zoff=(0, 0), lda=6144, wsrc=("arg", "w_fc2"), w_zoff=(0, 0), ldb=1536, wkn=True,
         osrc=("arg", "out"), o_zoff=(0, 0), ldo=1536, UN=2, epi="gate_m")
    hdr = []
    for (n, g, b, l, v, s) in KERNELS:
        hdr.append(f"; @launch kernel={n} grid=({g},1,1) block=({b},1,1) lds={l}")
    hdr.append('.amdgcn_target "amdgcn-amd-amdhsa--gfx950"')
    tail = ['.section .rodata,"a"']
    for (n, g, b, l, v, s) in KERNELS:
        va = (v + 3) // 4 * 4
        tail += [".p2align 6", f".amdhsa_kernel {n}", f"  .amdhsa_next_free_vgpr {va}",
                 f"  .amdhsa_next_free_sgpr {s}", f"  .amdhsa_accum_offset {va}",
                 "  .amdhsa_group_segment_fixed_size 0", "  .amdhsa_kernarg_size 80",
                 "  .amdhsa_user_sgpr_count 2", "  .amdhsa_user_sgpr_kernarg_segment_ptr 1",
                 "  .amdhsa_system_sgpr_workgroup_id_x 1", ".end_amdhsa_kernel"]
    return "\n".join(hdr + OUT + tail) + "\n"


if __name__ == "__main__":
    open(sys.argv[1] if len(sys.argv) > 1 else "standalone__dit_block__diffusion.s", "w").write(build())
```

```python
import math, sys

MB = 1 << 20
WS_MOD = 0
WS_H = 1 * MB
WS_QKV = 4 * MB
WS_S = 16 * MB
WS_P = 24 * MB
WS_O = 32 * MB
WS_X1 = 36 * MB
WS_H2 = 40 * MB
WS_G = 44 * MB

KA = dict(x=0, c=8, wqkv=16, wo=24, w_mod=32, w_fc1=40, w_fc2=48, out=56, dbg=64, ws=72)

OUT = []
KERNELS = []


def e(s):
    OUT.append("    " + s)


def lab(s):
    OUT.append(s + ":")


def magic(d):
    return (0x100000000 + d - 1) // d


def sdiv(dst, src, d, tmp):
    if d & (d - 1) == 0:
        e(f"s_lshr_b32 {dst}, {src}, {int(math.log2(d))}")
    else:
        e(f"s_mov_b32 {tmp}, {magic(d)}")
        e(f"s_mul_hi_u32 {dst}, {src}, {tmp}")


def vdiv(dst, src, d, stmp):
    if d & (d - 1) == 0:
        e(f"v_lshrrev_b32 {dst}, {int(math.log2(d))}, {src}")
    else:
        e(f"s_mov_b32 {stmp}, {magic(d)}")
        e(f"v_mul_hi_u32 {dst}, {stmp}, {src}")


def srd(base, ptr_lo, ptr_hi, off, nbytes):
    if off:
        e(f"s_add_u32 s{base}, {ptr_lo}, {off}")
        e(f"s_addc_u32 s{base+1}, {ptr_hi}, 0")
    else:
        e(f"s_mov_b32 s{base}, {ptr_lo}")
        e(f"s_mov_b32 s{base+1}, {ptr_hi}")
    e(f"s_mov_b32 s{base+2}, {nbytes}")
    e(f"s_mov_b32 s{base+3}, 0x00020000")


def begin(name):
    OUT.append(".text")
    OUT.append(f".globl {name}")
    OUT.append(".p2align 8")
    OUT.append(f".type {name},@function")
    lab(name)


def load_src(src, sp):
    kind, v = src
    e(f"s_load_dwordx2 s[{sp}:{sp+1}], s[0:1], {KA[v] if kind == 'arg' else KA['ws']}")
    return 0 if kind == 'arg' else v


def gemm(name, *, Z, TM, TN, BM, BN, K, WM, WN,
         xsrc, x_zoff, lda, wsrc, w_zoff, ldb, wkn,
         osrc, o_zoff, ldo, epi, BK=64, UN=1):
    NST = 3 * UN
    NW = WM * WN
    MT, NT = BM // WM // 16, BN // WN // 16
    KS = BK // 32
    nsteps = K // BK
    xin = BM * (BK * 2) // 1024
    if wkn:
        CPR = BN // 8 + (2 if (BN // 16) % 2 == 0 else 0)
        wbytes = BK * CPR * 16
    else:
        CPR = BK // 8
        wbytes = BN * BK * 2
    win = (wbytes + 1023) // 1024
    assert xin % NW == 0
    tot = xin + win
    tot = (tot + NW - 1) // NW * NW
    per = tot // NW
    STG = tot * 1024
    XOFF, WOFF = 0, xin * 1024
    LDS = STG * NST
    ACC = 4
    nacc = MT * NT * 4
    XF = ACC + nacc
    WF = XF + 2 * MT * 4
    VA = WF + 2 * NT * 4
    VXR = VA + per
    VWR = VXR + 1
    VT = VWR + 1
    nv = VT + 12 + 4 * 3 * UN + 4
    begin(name)
    grid = Z * TM * TN
    e(f"s_cmp_ge_u32 s2, {grid}")
    e(f"s_cbranch_scc1 {name}_end")
    xo = load_src(xsrc, 20)
    wo_ = load_src(wsrc, 22)
    oo = load_src(osrc, 24)
    e(f"s_load_dwordx2 s[26:27], s[0:1], {KA['ws']}")
    e(f"s_load_dwordx2 s[28:29], s[0:1], {KA['x']}")
    e("s_and_b32 s40, s2, 7")
    e(f"s_mul_i32 s40, s40, {grid//8}")
    e("s_lshr_b32 s2, s2, 3")
    e("s_add_u32 s2, s2, s40")
    sdiv("s30", "s2", TM * TN, "s40")
    e(f"s_mul_i32 s31, s30, {TM*TN}")
    e("s_sub_u32 s31, s2, s31")
    sdiv("s32", "s31", TN, "s40")
    e(f"s_mul_i32 s33, s32, {TN}")
    e("s_sub_u32 s33, s31, s33")
    e("s_lshr_b32 s34, s30, 1")
    e("s_and_b32 s35, s30, 1")
    e("v_lshrrev_b32 v200, 6, v0" if nv <= 200 else f"v_lshrrev_b32 v{nv}, 6, v0")
    wtmp = 200 if nv <= 200 else nv
    nv = max(nv, wtmp + 1)
    e("s_nop 0")
    e(f"v_readfirstlane_b32 s36, v{wtmp}")
    e("v_and_b32 v1, 63, v0")

    def zoff(dst, cb, ch, extra_mul):
        e(f"s_mul_i32 {dst}, s34, {cb}")
        e(f"s_mul_i32 s40, s35, {ch}")
        e(f"s_add_u32 {dst}, {dst}, s40")
        for (sr, mul) in extra_mul:
            e(f"s_mul_i32 s40, {sr}, {mul}")
            e(f"s_add_u32 {dst}, {dst}, s40")
    zoff("s37", x_zoff[0], x_zoff[1], [("s32", BM * lda)])
    zoff("s38", w_zoff[0], w_zoff[1], [("s33", BN * 2 if wkn else BN * ldb)])
    zoff("s39", o_zoff[0], o_zoff[1], [("s32", BM * ldo), ("s33", BN * 2)])
    e("s_waitcnt lgkmcnt(0)")
    for (b, p, co, so) in ((8, 20, xo, "s37"), (12, 22, wo_, "s38"), (16, 24, oo, "s39")):
        e(f"s_add_u32 s{b}, s{p}, {co}")
        e(f"s_addc_u32 s{b+1}, s{p+1}, 0")
        e(f"s_add_u32 s{b}, s{b}, {so}")
        e(f"s_addc_u32 s{b+1}, s{b+1}, 0")
        e(f"s_mov_b32 s{b+3}, 0x00020000")
    e(f"s_mov_b32 s10, {(BM-1)*lda + K*2}")
    e(f"s_mov_b32 s14, {((K-1)*ldb + BN*2) if wkn else ((BN-1)*ldb + K*2)}")
    e(f"s_mov_b32 s18, {(BM-1)*ldo + BN*2}")
    for j in range(per):
        t0 = j * NW
        e(f"s_lshl_b32 s40, s36, 6")
        e(f"v_add_u32 v{VT}, s40, v1")
        if t0 < xin:
            e(f"v_add_u32 v{VT}, {t0*64}, v{VT}")
            e(f"v_lshrrev_b32 v{VT+1}, 3, v{VT}")
            e(f"v_and_b32 v{VT+2}, 7, v{VT}")
            e(f"v_and_b32 v{VT+3}, 7, v{VT+1}")
            e(f"v_xor_b32 v{VT+2}, v{VT+2}, v{VT+3}")
            e(f"s_mov_b32 s40, {lda}")
            e(f"v_mul_lo_u32 v{VT+1}, s40, v{VT+1}")
            e(f"v_lshl_add_u32 v{VA+j}, v{VT+2}, 4, v{VT+1}")
        else:
            e(f"v_add_u32 v{VT}, {(t0-xin)*64}, v{VT}")
            if wkn:
                vdiv(f"v{VT+1}", f"v{VT}", CPR, "s40")
                e(f"v_mul_u32_u24 v{VT+2}, {CPR}, v{VT+1}")
                e(f"v_sub_u32 v{VT+2}, v{VT}, v{VT+2}")
                e(f"v_cmp_gt_u32 vcc, {BN//8}, v{VT+2}")
                e("s_nop 1")
                e(f"v_cndmask_b32 v{VT+2}, 0, v{VT+2}, vcc")
                e(f"v_min_u32 v{VT+1}, {BK-1}, v{VT+1}")
                e(f"v_and_b32 v{VT+3}, 0xfffffff3, v{VT+1}")
                e(f"v_lshlrev_b32 v{VT+4}, 1, v{VT+1}")
                e(f"v_and_b32 v{VT+4}, 8, v{VT+4}")
                e(f"v_or_b32 v{VT+3}, v{VT+3}, v{VT+4}")
                e(f"v_lshrrev_b32 v{VT+4}, 1, v{VT+1}")
                e(f"v_and_b32 v{VT+4}, 4, v{VT+4}")
                e(f"v_or_b32 v{VT+3}, v{VT+3}, v{VT+4}")
                e(f"s_mov_b32 s40, {ldb}")
                e(f"v_mul_lo_u32 v{VT+3}, s40, v{VT+3}")
                e(f"v_lshl_add_u32 v{VA+j}, v{VT+2}, 4, v{VT+3}")
            else:
                e(f"v_lshrrev_b32 v{VT+1}, 3, v{VT}")
                e(f"v_min_u32 v{VT+1}, {BN-1}, v{VT+1}")
                e(f"v_and_b32 v{VT+2}, 7, v{VT}")
                e(f"v_and_b32 v{VT+3}, 7, v{VT+1}")
                e(f"v_xor_b32 v{VT+2}, v{VT+2}, v{VT+3}")
                e(f"s_mov_b32 s40, {ldb}")
                e(f"v_mul_lo_u32 v{VT+1}, s40, v{VT+1}")
                e(f"v_lshl_add_u32 v{VA+j}, v{VT+2}, 4, v{VT+1}")
    sdiv("s41", "s36", WN, "s40")
    e(f"s_mul_i32 s42, s41, {WN}")
    e("s_sub_u32 s42, s36, s42")
    e(f"v_and_b32 v{VT}, 15, v1")
    e(f"v_lshrrev_b32 v{VT+1}, 4, v1")
    e(f"s_mul_i32 s40, s41, {MT*16}")
    e(f"v_add_u32 v{VT+2}, s40, v{VT}")
    e(f"v_and_b32 v{VT+3}, 7, v{VT+2}")
    e(f"v_xor_b32 v{VT+3}, v{VT+3}, v{VT+1}")
    e(f"v_lshlrev_b32 v{VT+2}, 7, v{VT+2}")
    e(f"v_lshl_add_u32 v{VXR}, v{VT+3}, 4, v{VT+2}")
    if wkn:
        e(f"v_lshrrev_b32 v{VT+2}, 2, v1")
        e(f"v_and_b32 v{VT+2}, 3, v{VT+2}")
        e(f"v_and_b32 v{VT+3}, 1, v{VT+1}")
        e(f"v_lshl_add_u32 v{VT+2}, v{VT+3}, 2, v{VT+2}")
        e(f"v_lshrrev_b32 v{VT+3}, 1, v{VT+1}")
        e(f"v_lshl_add_u32 v{VT+2}, v{VT+3}, 4, v{VT+2}")
        e(f"v_mul_u32_u24 v{VT+2}, {CPR*16}, v{VT+2}")
        e(f"v_and_b32 v{VT+3}, 3, v1")
        e(f"v_lshl_add_u32 v{VT+2}, v{VT+3}, 3, v{VT+2}")
        e(f"s_mul_i32 s40, s42, {NT*32}")
        e(f"v_add_u32 v{VWR}, s40, v{VT+2}")
        e(f"v_add_u32 v{VWR}, {WOFF}, v{VWR}")
    else:
        e(f"s_mul_i32 s40, s42, {NT*16}")
        e(f"v_add_u32 v{VT+2}, s40, v{VT}")
        e(f"v_and_b32 v{VT+3}, 7, v{VT+2}")
        e(f"v_xor_b32 v{VT+3}, v{VT+3}, v{VT+1}")
        e(f"v_lshlrev_b32 v{VT+2}, 7, v{VT+2}")
        e(f"v_lshl_add_u32 v{VWR}, v{VT+3}, 4, v{VT+2}")
        e(f"v_add_u32 v{VWR}, {WOFF}, v{VWR}")
    e("s_lshl_b32 s43, s36, 10")
    e("s_mov_b32 s44, 0")
    e("s_mov_b32 s45, 0")

    def issue(stage):
        for j in range(per):
            e(f"s_add_u32 m0, s43, {stage*STG + j*NW*1024}")
            e("s_nop 0")
            if j * NW < xin:
                e(f"buffer_load_dwordx4 v{VA+j}, s[8:11], s44 offen lds")
            else:
                e(f"buffer_load_dwordx4 v{VA+j}, s[12:15], s45 offen lds")
        e(f"s_add_u32 s44, s44, {BK*2}")
        e(f"s_add_u32 s45, s45, {BK*ldb if wkn else BK*2}")

    def reads(stage, ks, buf):
        sb = 0
        bx0, bx1, bw0, bw1 = [VT + 12 + stage * 4 + q for q in range(4)]
        for mt in range(MT):
            r = XF + (buf * MT + mt) * 4
            if ks == 0:
                e(f"ds_read_b128 v[{r}:{r+3}], v{bx0} offset:{sb + mt*2048}")
            else:
                e(f"ds_read_b128 v[{r}:{r+3}], v{bx1} offset:{sb + mt*2048}")
        for nt in range(NT):
            r = WF + (buf * NT + nt) * 4
            if wkn:
                o = sb + ks * 32 * CPR * 16 + nt * 32
                e(f"ds_read_b64_tr_b16 v[{r}:{r+1}], v{bw0} offset:{o}")
                e(f"ds_read_b64_tr_b16 v[{r+2}:{r+3}], v{bw0} offset:{o + 8*CPR*16}")
            else:
                if ks == 0:
                    e(f"ds_read_b128 v[{r}:{r+3}], v{bw0} offset:{sb + nt*2048}")
                else:
                    e(f"ds_read_b128 v[{r}:{r+3}], v{bw1} offset:{sb + nt*2048}")
    nrd = MT + (2 * NT if wkn else NT)

    def mfmas(buf, first):
        for nt in range(NT):
            for mt in range(MT):
                a = ACC + (nt * MT + mt) * 4
                w = WF + (buf * NT + nt) * 4
                x = XF + (buf * MT + mt) * 4
                c = "0" if first else f"v[{a}:{a+3}]"
                e(f"v_mfma_f32_16x16x32_bf16 v[{a}:{a+3}], v[{w}:{w+3}], v[{x}:{x+3}], {c}")
    assert KS == 2
    e(f"v_xor_b32 v{VT+8}, 64, v{VXR}")
    e(f"v_xor_b32 v{VT+9}, 64, v{VWR}")
    for s_ in range(NST):
        for q, src in enumerate((VXR, VT + 8, VWR, VT + 9)):
            e(f"v_add_u32 v{VT+12+s_*4+q}, {s_*STG}, v{src}")
    ng = nsteps // UN
    assert ng * UN == nsteps
    for g_ in range(min(2, ng)):
        for u in range(UN):
            issue(g_ * UN + u)
    for g_ in range(ng):
        inflight_after = min(1, ng - 1 - g_)
        e(f"s_waitcnt vmcnt({inflight_after*per*UN})")
        e("s_barrier")
        subs = [((g_ % 3) * UN + u, ks) for u in range(UN) for ks in range(2)]
        reads(subs[0][0], subs[0][1], 0)
        if g_ + 2 < ng:
            for u in range(UN):
                issue(((g_ + 2) % 3) * UN + u)
        for j in range(len(subs)):
            if j + 1 < len(subs):
                reads(subs[j+1][0], subs[j+1][1], (j + 1) % 2)
                e(f"s_waitcnt lgkmcnt({min(nrd,15)})")
            else:
                e("s_waitcnt lgkmcnt(0)")
            mfmas(j % 2, g_ == 0 and j == 0)
    e(f"v_and_b32 v{VT}, 15, v1")
    e(f"v_lshrrev_b32 v{VT+1}, 4, v1")
    e(f"s_mul_i32 s40, s41, {MT*16}")
    e(f"v_add_u32 v{VT}, s40, v{VT}")
    e(f"s_mul_i32 s40, s42, {NT*16}")
    e(f"v_lshl_add_u32 v{VT+1}, v{VT+1}, 2, s40")
    e(f"s_mov_b32 s40, {ldo}")
    e(f"v_mul_lo_u32 v{VT+2}, s40, v{VT}")
    e(f"v_lshl_add_u32 v{VT+2}, v{VT+1}, 1, v{VT+2}")
    if epi in ("gate_a", "gate_m"):
        gbase = (2 if epi == "gate_a" else 5) * 768 * 4
        e(f"s_mul_i32 s46, s32, {BM}")
        e("s_lshr_b32 s46, s46, 10")
        e(f"s_mul_i32 s46, s46, {4608*4}")
        e(f"s_mul_i32 s40, s33, {BN*4}")
        e("s_add_u32 s46, s46, s40")
        e(f"s_add_u32 s46, s46, {gbase}")
        srd(48, "s26", "s27", WS_MOD, 4608 * 2 * 4)
        if epi == "gate_a":
            e("s_add_u32 s52, s28, s39")
            e("s_addc_u32 s53, s29, 0")
        else:
            e(f"s_add_u32 s52, s26, {WS_X1}")
            e("s_addc_u32 s53, s27, 0")
            e("s_add_u32 s52, s52, s39")
            e("s_addc_u32 s53, s53, 0")
        e(f"s_mov_b32 s54, {(BM-1)*ldo + BN*2}")
        e("s_mov_b32 s55, 0x00020000")
        e(f"v_lshlrev_b32 v{VT+3}, 2, v{VT+1}")
    e("s_nop 7")
    e("s_nop 7")
    G = XF
    for nt in range(NT):
        if epi in ("gate_a", "gate_m"):
            e(f"buffer_load_dwordx4 v[{G}:{G+3}], v{VT+3}, s[48:51], s46 offen offset:{nt*64}")
            for mt in range(MT):
                e(f"buffer_load_dwordx2 v[{G+4+2*mt}:{G+5+2*mt}], v{VT+2}, s[52:55], 0 offen offset:{mt*16*ldo + nt*32}"
                  if mt * 16 * ldo + nt * 32 < 4096 else "")
                if mt * 16 * ldo + nt * 32 >= 4096:
                    OUT.pop()
                    e(f"v_add_u32 v{VT+4}, {mt*16*ldo + nt*32}, v{VT+2}")
                    e(f"buffer_load_dwordx2 v[{G+4+2*mt}:{G+5+2*mt}], v{VT+4}, s[52:55], 0 offen")
            e("s_waitcnt vmcnt(0)")
        for mt in range(MT):
            a = ACC + (nt * MT + mt) * 4
            if epi == "scale":
                sc = 384 ** -0.5
                import struct
                scb = struct.unpack("<I", struct.pack("<f", sc))[0]
                e(f"v_cvt_pk_bf16_f32 v{a}, v{a}, v{a+1}")
                e(f"v_cvt_pk_bf16_f32 v{a+2}, v{a+2}, v{a+3}")
                e(f"v_and_b32 v{a+1}, 0xffff0000, v{a}")
                e(f"v_lshlrev_b32 v{a}, 16, v{a}")
                e(f"v_and_b32 v{a+3}, 0xffff0000, v{a+2}")
                e(f"v_lshlrev_b32 v{a+2}, 16, v{a+2}")
                for r in range(4):
                    e(f"v_mul_f32 v{a+r}, {hex(scb)}, v{a+r}")
            elif epi == "gelu":
                for r in range(4):
                    x = f"v{a+r}"
                    t = f"v{VT+10}"
                    e(f"v_mul_f32 {t}, {x}, {x}")
                    e(f"v_mov_b32 v{VT+11}, 0x3d372713")
                    e(f"v_fma_f32 {t}, {t}, v{VT+11}, 1.0")
                    e(f"v_mul_f32 {t}, {t}, {x}")
                    e(f"v_mul_f32 {t}, 0xc0135761, {t}")
                    e(f"v_exp_f32 {t}, {t}")
                    e("s_nop 0")
                    e(f"v_add_f32 {t}, 1.0, {t}")
                    e(f"v_rcp_f32 {t}, {t}")
                    e("s_nop 0")
                    e(f"v_mul_f32 {x}, {x}, {t}")
            elif epi in ("gate_a", "gate_m"):
                for r in range(4):
                    rr = G + 4 + 2 * mt + r // 2
                    t = f"v{VT+10}"
                    if r % 2 == 0:
                        e(f"v_lshlrev_b32 {t}, 16, v{rr}")
                    else:
                        e(f"v_and_b32 {t}, 0xffff0000, v{rr}")
                    e(f"v_fma_f32 v{a+r}, v{a+r}, v{G+r}, {t}")
            e(f"v_cvt_pk_bf16_f32 v{a}, v{a}, v{a+1}")
            e(f"v_cvt_pk_bf16_f32 v{a+1}, v{a+2}, v{a+3}")
            o = mt * 16 * ldo + nt * 32
            if o < 4096:
                e(f"buffer_store_dwordx2 v[{a}:{a+1}], v{VT+2}, s[16:19], 0 offen offset:{o}")
            else:
                e(f"v_add_u32 v{VT+4}, {o}, v{VT+2}")
                e(f"buffer_store_dwordx2 v[{a}:{a+1}], v{VT+4}, s[16:19], 0 offen")
    lab(f"{name}_end")
    e("s_endpgm")
    KERNELS.append((name, grid, NW * 64, LDS, nv, 64))


def mod_kernel(name):
    begin(name)
    e("s_cmp_ge_u32 s2, 72")
    e(f"s_cbranch_scc1 {name}_end")
    e(f"s_load_dwordx2 s[20:21], s[0:1], {KA['c']}")
    e(f"s_load_dwordx2 s[22:23], s[0:1], {KA['w_mod']}")
    e(f"s_load_dwordx2 s[24:25], s[0:1], {KA['ws']}")
    e("s_waitcnt lgkmcnt(0)")
    srd(8, "s20", "s21", 0, 2 * 768 * 2)
    srd(12, "s22", "s23", 0, 768 * 4608 * 2)
    srd(16, "s24", "s25", WS_MOD, 2 * 4608 * 4)
    for i in range(6):
        e(f"v_lshlrev_b32 v2, 1, v0")
        e(f"buffer_load_ushort v{4+i}, v2, s[8:11], 0 offen offset:{512*i}")
    e("s_waitcnt vmcnt(0)")
    for i in range(6):
        x = f"v{4+i}"
        e(f"v_lshlrev_b32 {x}, 16, {x}")
        e(f"v_mul_f32 v10, 0xbfb8aa3b, {x}")
        e("v_exp_f32 v10, v10")
        e("s_nop 0")
        e("v_add_f32 v10, 1.0, v10")
        e("v_rcp_f32 v10, v10")
        e("s_nop 0")
        e(f"v_mul_f32 {x}, {x}, v10")
        e(f"v_cvt_pk_bf16_f32 {x}, {x}, {x}")
        e(f"v_lshlrev_b32 {x}, 16, {x}")
        e("v_lshlrev_b32 v2, 2, v0")
        e(f"ds_write_b32 v2, {x} offset:{1024*i}")
    e("s_waitcnt lgkmcnt(0)")
    e("s_barrier")
    e("v_and_b32 v2, 7, v0")
    e("v_lshrrev_b32 v3, 3, v0")
    e("s_lshl_b32 s30, s2, 7")
    e("s_mov_b32 s31, 9216")
    e("v_mul_lo_u32 v4, s31, v3")
    e("v_lshl_add_u32 v4, v2, 4, v4")
    for i in range(24):
        e(f"v_add_u32 v5, {i*32*9216}, v4")
        e(f"buffer_load_dwordx4 v[{32+4*i}:{35+4*i}], v5, s[12:15], s30 offen")
    e("v_lshlrev_b32 v6, 2, v3")
    for j in range(16):
        e(f"v_mov_b32 v{8+j}, 0")
    for i in range(24):
        e(f"ds_read_b32 v24, v6 offset:{i*128}")
        e(f"ds_read_b32 v25, v6 offset:{3072 + i*128}")
        e(f"s_waitcnt vmcnt({23-i}) lgkmcnt(0)")
        for q in range(4):
            w = 32 + 4 * i + q
            e(f"v_lshlrev_b32 v26, 16, v{w}")
            e(f"v_and_b32 v27, 0xffff0000, v{w}")
            e(f"v_fmac_f32 v{8+2*q}, v24, v26")
            e(f"v_fmac_f32 v{9+2*q}, v24, v27")
            e(f"v_fmac_f32 v{16+2*q}, v25, v26")
            e(f"v_fmac_f32 v{17+2*q}, v25, v27")
    e("s_barrier")
    e("v_lshlrev_b32 v6, 9, v3")
    e("v_lshl_add_u32 v6, v2, 5, v6")
    e("ds_write_b128 v6, v[8:11] offset:8192")
    e("ds_write_b128 v6, v[12:15] offset:8208")
    e("ds_write_b128 v6, v[16:19] offset:8448")
    e("ds_write_b128 v6, v[20:23] offset:8464")
    e("s_waitcnt lgkmcnt(0)")
    e("s_barrier")
    e("v_cmp_gt_u32 vcc, 128, v0")
    e("s_and_saveexec_b64 s[32:33], vcc")
    e(f"s_cbranch_execz {name}_end")
    e("v_lshlrev_b32 v6, 2, v0")
    for i in range(32):
        e(f"ds_read_b32 v{32+i}, v6 offset:{8192 + i*512}")
    e("s_waitcnt lgkmcnt(0)")
    for i in range(1, 32):
        e(f"v_add_f32 v32, v32, v{32+i}")
    e("v_cvt_pk_bf16_f32 v32, v32, v32")
    e("v_lshlrev_b32 v32, 16, v32")
    e("v_lshrrev_b32 v7, 6, v0")
    e("v_mul_u32_u24 v7, 4608, v7")
    e("v_and_b32 v8, 63, v0")
    e("v_add_u32 v7, v7, v8")
    e("s_lshl_b32 s30, s2, 6")
    e("v_add_u32 v7, s30, v7")
    e("v_lshlrev_b32 v7, 2, v7")
    e("buffer_store_dword v32, v7, s[16:19], 0 offen")
    lab(f"{name}_end")
    e("s_endpgm")
    KERNELS.append((name, 72, 256, 8192 + 16384, 136, 64))


def wave_sum(v, t, sreg):
    for off in (0x041F, 0x081F, 0x101F, 0x201F, 0x401F):
        e(f"ds_swizzle_b32 {t}, {v} offset:{hex(off)}")
        e("s_waitcnt lgkmcnt(0)")
        e(f"v_add_f32 {v}, {v}, {t}")
    e("s_nop 0")
    e(f"v_readlane_b32 {sreg}, {v}, 32")
    e(f"v_readlane_b32 s59, {v}, 0")
    e("s_nop 1")
    e(f"v_mov_b32 {v}, {sreg}")
    e(f"v_add_f32 {v}, s59, {v}")


def ln_kernel(name, src, dst_off, sh_i, sc_i):
    begin(name)
    e("s_cmp_ge_u32 s2, 512")
    e(f"s_cbranch_scc1 {name}_end")
    so = load_src(src, 20)
    e(f"s_load_dwordx2 s[24:25], s[0:1], {KA['ws']}")
    e("s_waitcnt lgkmcnt(0)")
    srd(8, "s20", "s21", so, 2048 * 1536)
    srd(12, "s24", "s25", WS_MOD, 2 * 4608 * 4)
    srd(16, "s24", "s25", dst_off, 2048 * 1536)
    e("v_lshrrev_b32 v2, 6, v0")
    e("s_lshl_b32 s30, s2, 2")
    e("v_add_u32 v2, s30, v2")
    e("v_and_b32 v1, 63, v0")
    e("s_movk_i32 s31, 1536")
    e("v_mul_lo_u32 v3, s31, v2")
    e("v_lshl_add_u32 v3, v1, 3, v3")
    for j in range(3):
        e(f"buffer_load_dwordx2 v[{4+2*j}:{5+2*j}], v3, s[8:11], 0 offen offset:{512*j}")
    e("v_lshrrev_b32 v10, 10, v2")
    e("v_mul_u32_u24 v10, 18432, v10")
    e("v_lshl_add_u32 v10, v1, 4, v10")
    e(f"v_add_u32 v11, {sh_i*3072}, v10")
    for j in range(3):
        e(f"buffer_load_dwordx4 v[{40+4*j}:{43+4*j}], v11, s[12:15], 0 offen offset:{1024*j}")
    e(f"v_add_u32 v11, {sc_i*3072}, v10")
    for j in range(3):
        e(f"buffer_load_dwordx4 v[{56+4*j}:{59+4*j}], v11, s[12:15], 0 offen offset:{1024*j}")
    e("s_waitcnt vmcnt(6)")
    for j in range(6):
        e(f"v_lshlrev_b32 v{20+2*j}, 16, v{4+j}")
        e(f"v_and_b32 v{21+2*j}, 0xffff0000, v{4+j}")
    e("v_add_f32 v12, v20, v21")
    for j in range(2, 12):
        e(f"v_add_f32 v12, v12, v{20+j}")
    wave_sum("v12", "v13", "s58")
    e("v_mul_f32 v12, 0x3aaaaaab, v12")
    for j in range(12):
        e(f"v_sub_f32 v{20+j}, v{20+j}, v12")
    e("v_mul_f32 v14, v20, v20")
    for j in range(1, 12):
        e(f"v_fmac_f32 v14, v{20+j}, v{20+j}")
    wave_sum("v14", "v13", "s58")
    e("v_mov_b32 v15, 0x3727c5ac")
    e("v_fmac_f32 v15, 0x3aaaaaab, v14")
    e("v_rsq_f32 v15, v15")
    e("s_waitcnt vmcnt(0)")
    for j in range(12):
        e(f"v_mul_f32 v{20+j}, v{20+j}, v15")
        e(f"v_add_f32 v13, 1.0, v{56+j}")
        e(f"v_fma_f32 v{20+j}, v{20+j}, v13, v{40+j}")
    for j in range(6):
        e(f"v_cvt_pk_bf16_f32 v{4+j}, v{20+2*j}, v{21+2*j}")
    for j in range(3):
        e(f"buffer_store_dwordx2 v[{4+2*j}:{5+2*j}], v3, s[16:19], 0 offen offset:{512*j}")
    lab(f"{name}_end")
    e("s_endpgm")
    KERNELS.append((name, 512, 256, 0, 72, 64))


def wave_max(v, t, sreg):
    for off in (0x041F, 0x081F, 0x101F, 0x201F, 0x401F):
        e(f"ds_swizzle_b32 {t}, {v} offset:{hex(off)}")
        e("s_waitcnt lgkmcnt(0)")
        e(f"v_max_f32 {v}, {v}, {t}")
    e("s_nop 0")
    e(f"v_readlane_b32 {sreg}, {v}, 32")
    e(f"v_readlane_b32 s59, {v}, 0")
    e("s_nop 1")
    e(f"v_mov_b32 {v}, {sreg}")
    e(f"v_max_f32 {v}, s59, {v}")


def softmax_kernel(name):
    begin(name)
    e("s_cmp_ge_u32 s2, 1024")
    e(f"s_cbranch_scc1 {name}_end")
    e(f"s_load_dwordx2 s[24:25], s[0:1], {KA['ws']}")
    e("s_waitcnt lgkmcnt(0)")
    srd(8, "s24", "s25", WS_S, 8 * MB)
    srd(16, "s24", "s25", WS_P, 8 * MB)
    e("v_lshrrev_b32 v2, 6, v0")
    e("s_lshl_b32 s30, s2, 2")
    e("v_add_u32 v2, s30, v2")
    e("v_and_b32 v1, 63, v0")
    e("v_lshlrev_b32 v3, 11, v2")
    e("v_lshl_add_u32 v3, v1, 4, v3")
    e("buffer_load_dwordx4 v[4:7], v3, s[8:11], 0 offen")
    e("buffer_load_dwordx4 v[8:11], v3, s[8:11], 0 offen offset:1024")
    e("s_waitcnt vmcnt(0)")
    for j in range(8):
        e(f"v_lshlrev_b32 v{20+2*j}, 16, v{4+j}")
        e(f"v_and_b32 v{21+2*j}, 0xffff0000, v{4+j}")
    e("v_max_f32 v12, v20, v21")
    for j in range(2, 16):
        e(f"v_max_f32 v12, v12, v{20+j}")
    wave_max("v12", "v13", "s58")
    e("v_mul_f32 v12, 0x3fb8aa3b, v12")
    e("v_mov_b32 v14, 0")
    for j in range(16):
        x = f"v{20+j}"
        e(f"v_mul_f32 {x}, 0x3fb8aa3b, {x}")
        e(f"v_sub_f32 {x}, {x}, v12")
        e(f"v_exp_f32 {x}, {x}")
        e("s_nop 0")
        e(f"v_add_f32 v14, v14, {x}")
    wave_sum("v14", "v13", "s58")
    e("v_rcp_f32 v14, v14")
    e("s_nop 0")
    for j in range(16):
        e(f"v_mul_f32 v{20+j}, v{20+j}, v14")
    for j in range(8):
        e(f"v_cvt_pk_bf16_f32 v{4+j}, v{20+2*j}, v{21+2*j}")
    e("buffer_store_dwordx4 v[4:7], v3, s[16:19], 0 offen")
    e("buffer_store_dwordx4 v[8:11], v3, s[16:19], 0 offen offset:1024")
    lab(f"{name}_end")
    e("s_endpgm")
    KERNELS.append((name, 1024, 256, 0, 40, 64))


def build():
    mod_kernel("mod_kernel")
    ln_kernel("ln1_kernel", ("arg", "x"), WS_H, 0, 1)
    gemm("qkv_kernel", Z=1, TM=16, TN=16, BM=128, BN=144, K=768, WM=4, WN=1,
         xsrc=("ws", WS_H), x_zoff=(0, 0), lda=1536, wsrc=("arg", "wqkv"), w_zoff=(0, 0), ldb=4608, wkn=True,
         osrc=("ws", WS_QKV), o_zoff=(0, 0), ldo=4608, epi="none")
    gemm("s_kernel", Z=4, TM=8, TN=8, BM=128, BN=128, K=384, WM=2, WN=2,
         xsrc=("ws", WS_QKV), x_zoff=(1024 * 4608, 768), lda=4608,
         wsrc=("ws", WS_QKV + 1536), w_zoff=(1024 * 4608, 768), ldb=4608, wkn=False,
         osrc=("ws", WS_S), o_zoff=(2 * 1024 * 2048, 1024 * 2048), ldo=2048, epi="scale")
    softmax_kernel("sm_kernel")
    gemm("pv_kernel", Z=4, TM=16, TN=4, BM=64, BN=96, K=1024, WM=2, WN=2,
         xsrc=("ws", WS_P), x_zoff=(2 * 1024 * 2048, 1024 * 2048), lda=2048,
         wsrc=("ws", WS_QKV + 3072), w_zoff=(1024 * 4608, 768), ldb=4608, wkn=True,
         osrc=("ws", WS_O), o_zoff=(1024 * 1536, 768), ldo=1536, UN=2, epi="none")
    gemm("wo_kernel", Z=1, TM=32, TN=8, BM=64, BN=96, K=768, WM=2, WN=2,
         xsrc=("ws", WS_O), x_zoff=(0, 0), lda=1536, wsrc=("arg", "wo"), w_zoff=(0, 0), ldb=1536, wkn=True,
         osrc=("ws", WS_X1), o_zoff=(0, 0), ldo=1536, UN=2, epi="gate_a")
    ln_kernel("ln2_kernel", ("ws", WS_X1), WS_H2, 3, 4)
    gemm("fc1_kernel", Z=1, TM=16, TN=16, BM=128, BN=192, K=768, WM=2, WN=2,
         xsrc=("ws", WS_H2), x_zoff=(0, 0), lda=1536, wsrc=("arg", "w_fc1"), w_zoff=(0, 0), ldb=6144, wkn=True,
         osrc=("ws", WS_G), o_zoff=(0, 0), ldo=6144, epi="gelu")
    gemm("fc2_kernel", Z=1, TM=32, TN=8, BM=64, BN=96, K=3072, WM=2, WN=2,
         xsrc=("ws", WS_G), x_zoff=(0, 0), lda=6144, wsrc=("arg", "w_fc2"), w_zoff=(0, 0), ldb=1536, wkn=True,
         osrc=("arg", "out"), o_zoff=(0, 0), ldo=1536, UN=2, epi="gate_m")
    hdr = []
    for (n, g, b, l, v, s) in KERNELS:
        hdr.append(f"; @launch kernel={n} grid=({g},1,1) block=({b},1,1) lds={l}")
    hdr.append('.amdgcn_target "amdgcn-amd-amdhsa--gfx950"')
    tail = ['.section .rodata,"a"']
    for (n, g, b, l, v, s) in KERNELS:
        va = (v + 3) // 4 * 4
        tail += [".p2align 6", f".amdhsa_kernel {n}", f"  .amdhsa_next_free_vgpr {va}",
                 f"  .amdhsa_next_free_sgpr {s}", f"  .amdhsa_accum_offset {va}",
                 "  .amdhsa_group_segment_fixed_size 0", "  .amdhsa_kernarg_size 80",
                 "  .amdhsa_user_sgpr_count 2", "  .amdhsa_user_sgpr_kernarg_segment_ptr 1",
                 "  .amdhsa_system_sgpr_workgroup_id_x 1", ".end_amdhsa_kernel"]
    return "\n".join(hdr + OUT + tail) + "\n"


if __name__ == "__main__":
    open(sys.argv[1] if len(sys.argv) > 1 else "standalone__dit_block__diffusion.s", "w").write(build())
```
